```python
import torch

def _softmax(x, axis=-1):
    return torch.softmax(x, dim=axis)
def _gelu(x):
    return torch.nn.functional.gelu(x, approximate="tanh")
def _silu(x):
    return torch.nn.functional.silu(x)
def _sigmoid(x):
    return torch.sigmoid(x)
def _layernorm(x, axis=-1, eps=1e-5):
    m = x.mean(dim=axis, keepdim=True)
    v = x.var(dim=axis, keepdim=True, unbiased=False)
    return (x - m) / torch.sqrt(v + eps)
def _scatter_add(tgt, idx, src, axis=0):
    return tgt.clone().index_add_(axis, idx, src)
def _segment_sum(src, seg, n):
    out = torch.zeros((n,) + src.shape[1:], dtype=src.dtype)
    return out.index_add_(0, seg, src)
def _pad(x, pw):
    flat = tuple(v for pair in reversed(pw) for v in pair)
    return torch.nn.functional.pad(x, flat)

kernel_name = 'gated_mix__linear_attn_block__dense_activation_relu__prompt'

def setup_inputs():

    _w = (lambda a: (lambda t: t.to(torch.bfloat16) if t.is_floating_point() else t)(torch.as_tensor(a)))
    def _A_setup():
        B, S, D = 1, 2048, 576
        return {
            "x": _w((lambda *s: torch.randn(*s, dtype=torch.bfloat16) * 0.05)(B, S, D)),
            "wqkv": _w((lambda *s: torch.randn(*s, dtype=torch.bfloat16) * 0.8)(D, 3 * D)),
            "wo": _w((lambda *s: torch.randn(*s, dtype=torch.bfloat16) * 0.2)(D, D)),
        }
    _A_in = _A_setup()

    def _B_setup():
        B, S, D, Dff = 1, 2048, 576, 4608
        return {
            "x": _w((lambda *s: torch.randn(*s, dtype=torch.bfloat16) * 0.05)(B, S, D)),
            "w1": _w((lambda *s: torch.randn(*s, dtype=torch.bfloat16) * 0.05)(D, Dff)),
            "w2": _w((lambda *s: torch.randn(*s, dtype=torch.bfloat16) * 0.05)(Dff, D)),
        }
    _B_in = _B_setup()

    return {
        "A_x": _A_in["x"],
        "A_wqkv": _A_in["wqkv"],
        "A_wo": _A_in["wo"],
        "B_x": _B_in["x"],
        "B_w1": _B_in["w1"],
        "B_w2": _B_in["w2"],
        "gate_w": _w((lambda *s: torch.randn(*s, dtype=torch.bfloat16) * 0.05)(576) * 16.0),
    }

def reference(A_x, A_wqkv, A_wo, B_x, B_w1, B_w2, gate_w):
    def _A_ref(x, wqkv, wo):
        B, S, D = x.shape
        H = 32; Dh = D // H
        qkv = (lambda x, *d: x.permute(*d))((x @ wqkv).reshape(B, S, 3, H, Dh), 2, 0, 3, 1, 4)
        q, k, v = qkv[0], qkv[1], qkv[2]
        phi = lambda t: torch.where(t > 0, t + 1, torch.exp(t)) + 1e-6
        pq, pk = phi(q), phi(k)
        kv = torch.einsum("bhsd,bhse->bhde", pk, v)
        z = torch.einsum("bhsd->bhd", pk)
        num = torch.einsum("bhqd,bhde->bhqe", pq, kv)
        den = torch.einsum("bhqd,bhd->bhq", pq, z)[..., None] + 1e-6
        o = num / den
        return (lambda x, *d: x.permute(*d))(o, 0, 2, 1, 3).reshape(B, S, D) @ wo

    def _B_ref(x, w1, w2):
        h = torch.einsum("bsd,df->bsf", x, w1)
        zero = torch.zeros_like(h)
        h = torch.maximum(h, zero)
        return torch.einsum("bsf,fd->bsd", h, w2)

    x = A_x
    g = _sigmoid((x * gate_w).sum(-1, keepdims=True))
    a = _A_ref(x, A_wqkv, A_wo)
    b = _B_ref(x, B_w1, B_w2)
    return g * a + (1 - g) * b
```

```python
class Asm:
    def __init__(self):
        self.lines = []
        self.nlabel = 0
    def __call__(self, s):
        for ln in s.strip("\n").split("\n"):
            self.lines.append("    " + ln.strip() if not ln.strip().endswith(":") else ln.strip())
    def raw(self, s):
        self.lines.append(s)
    def label(self, name):
        self.lines.append(name + ":")
    def newlabel(self, pre="L"):
        self.nlabel += 1
        return f"{pre}_{self.nlabel}"
    def text(self):
        return "\n".join(self.lines) + "\n"
```

```python
import sys, os
from emit import Asm
DBG = os.environ.get('GDBG','')

NAME = "gated_mix__linear_attn_block__dense_activation_relu__prompt"
S, D, DFF, H, DH = 2048, 576, 4608, 32, 18
WS_H    = 0x0000000
WS_PQ   = 0x1400000
WS_G    = 0x1800000
WS_KVP  = 0x1B40000
WS_KVZ  = 0x1C00000
WS_O    = 0x2000000
WS_PART = 0x3000000
WS_SIZE = 0x10000000

BSTAGE = 18432
PF = 4
NBF = 6
VB = 80
VA = 16

def setup_lane_common(a):
    a("""
    v_and_b32 v1, 63, v0
    v_lshrrev_b32 v11, 6, v0
    s_nop 0
    v_readfirstlane_b32 s16, v11
    """)

def setup_A(a, strideA):
    a(f"""
    v_and_b32 v11, 15, v1
    s_lshl_b32 s22, s16, 5
    s_add_u32 s22, s22, s17
    v_add_u32 v11, s22, v11
    s_mov_b32 s23, {strideA}
    v_mul_lo_u32 v2, v11, s23
    v_lshrrev_b32 v12, 4, v1
    v_lshlrev_b32 v12, 4, v12
    v_add_u32 v2, v2, v12
    v_add_u32 v3, {16*strideA}, v2
    """)

def setup_B(a, strideB, split=None):
    for j in range(5):
        a(f"""
        s_mul_i32 s22, s16, 288
        s_add_u32 s22, s22, {64*j}
        v_add_u32 v11, s22, v1
        s_movk_i32 s23, 3641
        v_mul_lo_u32 v12, v11, s23
        v_lshrrev_b32 v12, 16, v12
        v_mul_u32_u24 v13, 18, v12
        v_sub_u32 v13, v11, v13
        v_lshrrev_b32 v14, 3, v12
        v_and_b32 v14, 1, v14
        v_lshlrev_b32 v14, 2, v14
        v_xor_b32 v12, v12, v14
        s_mov_b32 s23, {strideB}
        v_mul_lo_u32 v12, v12, s23
        v_lshlrev_b32 v14, 4, v13
        v_add_u32 v12, v12, v14
        """)
        if split is not None:
            a(f"""
            v_mov_b32 v14, {split}
            v_cmp_lt_u32 vcc, 8, v13
            v_cndmask_b32 v14, 0, v14, vcc
            v_add_u32 v12, v12, v14
            """)
        a(f"v_add_u32 v{4+j}, s18, v12")

def setup_tr(a):
    a("""
    v_lshrrev_b32 v11, 4, v1
    v_and_b32 v12, 15, v1
    v_lshrrev_b32 v13, 2, v12
    v_and_b32 v14, 3, v12
    v_and_b32 v15, 1, v11
    v_lshlrev_b32 v15, 2, v15
    v_lshlrev_b32 v11, 3, v11
    v_add_u32 v11, v11, v13
    v_add_u32 v12, v11, v15
    v_mul_u32_u24 v12, 288, v12
    v_lshlrev_b32 v14, 3, v14
    v_add_u32 v9, v12, v14
    v_xor_b32 v15, 4, v15
    v_add_u32 v12, v11, v15
    v_mul_u32_u24 v12, 288, v12
    v_add_u32 v10, v12, v14
    """)

def issue_A(a, st, setidx):
    base = VA + 16 * setidx
    if 'noA' in DBG:
        for i in range(4): a("buffer_load_dword v15, v2, s[4:7], s24 offen")
        return
    for rt in range(2):
        for ks in range(2):
            r = base + (rt * 2 + ks) * 4
            a(f"buffer_load_dwordx4 v[{r}:{r+3}], v{2+rt}, s[4:7], s24 offen offset:{ks*64}")
    a("s_add_u32 s24, s24, 128")

def issue_DMA(a, st, strideB):
    buf = st % 3
    for j in range(5):
        a(f"s_add_u32 m0, s26, {buf*BSTAGE + j*1024}")
        if j == 4:
            a("s_mov_b64 exec, 0xffffffff")
        else:
            a("s_nop 0")
        a(f"buffer_load_dwordx4 v{4+j}, s[8:11], s25 offen lds" if 'noB' not in DBG else "buffer_load_dword v15, v2, s[4:7], s24 offen")
        if j == 4:
            a("s_mov_b64 exec, -1")
    a(f"s_add_u32 s25, s25, {64*strideB}")

ASTAGE = 16384
LDS_A = 2 * BSTAGE

def setup_A_lds(a, strideA):
    a(f"""
    v_lshrrev_b32 v11, 3, v1
    s_lshl_b32 s22, s16, 5
    s_add_u32 s22, s22, s17
    v_add_u32 v12, s22, v11
    s_mov_b32 s23, {strideA}
    v_mul_lo_u32 v2, v12, s23
    v_lshrrev_b32 v12, 1, v11
    v_and_b32 v12, 7, v12
    v_and_b32 v13, 7, v1
    v_xor_b32 v12, v12, v13
    v_lshlrev_b32 v12, 4, v12
    v_xor_b32 v13, 64, v12
    v_add_u32 v105, v2, v13
    v_add_u32 v2, v2, v12
    v_and_b32 v11, 15, v1
    v_lshrrev_b32 v12, 4, v1
    v_lshrrev_b32 v13, 1, v11
    v_and_b32 v13, 7, v13
    v_xor_b32 v14, v12, v13
    v_lshlrev_b32 v14, 4, v14
    v_xor_b32 v15, 4, v12
    v_xor_b32 v15, v15, v13
    v_lshlrev_b32 v15, 4, v15
    s_lshl_b32 s22, s16, 12
    v_lshlrev_b32 v11, 7, v11
    v_add_u32 v11, s22, v11
    v_add_u32 v3, v11, v14
    v_add_u32 v104, v11, v15
    """)

def issue_stage(a, buf, strideA, strideB):
    a("s_cmp_gt_i32 s28, 0")
    a("s_cselect_b32 s22, s25, s29")
    a("s_cselect_b32 s23, s24, s29")
    for j in range(4):
        a(f"s_add_u32 m0, s31, {LDS_A + buf*ASTAGE + j*1024}")
        a(f"s_add_u32 s27, s23, {j*8*strideA}")
        a(f"buffer_load_dwordx4 v{2 if j%2==0 else 105}, s[4:7], s27 offen lds")
    for j in range(5):
        a(f"s_add_u32 m0, s26, {buf*BSTAGE + j*1024}")
        if j == 4:
            a("s_mov_b64 exec, 0xffffffff")
        else:
            a("s_nop 0")
        a(f"buffer_load_dwordx4 v{4+j}, s[8:11], s22 offen lds")
        if j == 4:
            a("s_mov_b64 exec, -1")
    a(f"s_add_u32 s25, s25, {64*strideB}")
    a("s_add_u32 s24, s24, 128")
    a("s_sub_u32 s28, s28, 1")

def engine(a, nst, strideA, strideB, swap):
    for i in range(72):
        a(f"v_accvgpr_write_b32 a{i}, 0")
    a(f"""
    s_mul_i32 s26, s16, 4608
    s_lshl_b32 s31, s16, 12
    s_mov_b32 s29, 0x7ffffff0
    s_mov_b32 s28, {nst}
    s_mov_b32 s30, {nst}
    """)
    issue_stage(a, 0, strideA, strideB)
    loop = a.newlabel("Lloop")
    lend = a.newlabel("Lend")
    a.label(loop)
    for st in range(2):
        a("s_waitcnt vmcnt(0)")
        a("s_barrier")
        issue_stage(a, 1 - st, strideA, strideB)
        buf = st
        for rt in range(2):
            for ks in range(2):
                r = VA + (rt * 2 + ks) * 4
                a(f"ds_read_b128 v[{r}:{r+3}], v{3 if ks == 0 else 104} offset:{LDS_A + buf*ASTAGE + rt*2048}")
        def rd(f):
            ks, t = divmod(f, 9)
            r = VB + (f % NBF) * 4
            off = buf * BSTAGE + ks * 9216 + t * 32
            a(f"ds_read_b64_tr_b16 v[{r}:{r+1}], v9 offset:{off}")
            a(f"ds_read_b64_tr_b16 v[{r+2}:{r+3}], v10 offset:{off}")
        for f in range(PF):
            rd(f)
        for f in range(18):
            if f + PF < 18:
                rd(f + PF)
            a(f"s_waitcnt lgkmcnt({2*min(PF, 17-f)})")
            ks, t = divmod(f, 9)
            r = VB + (f % NBF) * 4
            for rt in range(2):
                ar = VA + (rt * 2 + ks) * 4
                c = (rt * 9 + t) * 4
                if swap:
                    a(f"v_mfma_f32_16x16x32_bf16 a[{c}:{c+3}], v[{r}:{r+3}], v[{ar}:{ar+3}], a[{c}:{c+3}]")
                else:
                    a(f"v_mfma_f32_16x16x32_bf16 a[{c}:{c+3}], v[{ar}:{ar+3}], v[{r}:{r+3}], a[{c}:{c+3}]")
        a("s_sub_u32 s30, s30, 1")
        a("s_cmp_eq_u32 s30, 0")
        a(f"s_cbranch_scc1 {lend}" if st < 1 else f"s_cbranch_scc0 {loop}")
    a.label(lend)
    a("s_waitcnt vmcnt(0)")

WS_QKV = 0x1400000
WS_KVF = 0x1C00000
WS_O2  = 0x2000000

def kstart(a, name):
    a.raw(f".globl {name}\n.p2align 8\n.type {name},@function")
    a.label(name)

def store_epi(a, relu, f32part):
    a(f"""
    s_nop 7
    s_nop 7
    v_and_b32 v11, 15, v1
    s_lshl_b32 s22, s16, 5
    s_add_u32 s22, s22, s17
    v_add_u32 v11, s22, v11
    v_mul_lo_u32 v12, v11, s33
    v_lshrrev_b32 v13, 4, v1
    v_lshlrev_b32 v13, {4 if f32part else 3}, v13
    v_add_u32 v12, v12, v13
    v_add_u32 v12, s18, v12
    v_add_u32 v12, s34, v12
    s_lshl_b32 s22, s33, 4
    v_add_u32 v13, s22, v12
    """)
    for rt in range(2):
        for t in range(9):
            c = (rt * 9 + t) * 4
            b = 16 + 8 * (t % 4)
            a(f"""
            s_nop 1
            v_accvgpr_read_b32 v{b}, a{c}
            v_accvgpr_read_b32 v{b+1}, a{c+1}
            v_accvgpr_read_b32 v{b+2}, a{c+2}
            v_accvgpr_read_b32 v{b+3}, a{c+3}
            """)
            if f32part:
                a(f"buffer_store_dwordx4 v[{b}:{b+3}], v{12+rt}, s[12:15], 0 offen offset:{t*64}")
                continue
            if relu:
                for i in range(4): a(f"v_max_f32 v{b+i}, 0, v{b+i}")
            a(f"""
            v_cvt_pk_bf16_f32 v{b+4}, v{b}, v{b+1}
            v_cvt_pk_bf16_f32 v{b+5}, v{b+2}, v{b+3}
            buffer_store_dwordx2 v[{b+4}:{b+5}], v{12+rt}, s[12:15], 0 offen offset:{t*32}
            """)

def srd(a, d, lo, size):
    a(f"s_mov_b32 s{d}, s{lo}\ns_mov_b32 s{d+1}, s{lo+1}\ns_mov_b32 s{d+2}, {size}\ns_mov_b32 s{d+3}, 0x00020000")

def gen_k1(a):
    kstart(a, "k1_kernel")
    a("""
    s_load_dwordx4 s[40:43], s[0:1], 0
    s_load_dwordx2 s[44:45], s[0:1], 32
    s_load_dwordx2 s[46:47], s[0:1], 72
    s_cmp_ge_u32 s2, 704
    s_cbranch_scc1 k1_done
    """)
    setup_lane_common(a)
    a("s_waitcnt lgkmcnt(0)")
    srd(a, 4, 40, S*D*2); srd(a, 12, 46, WS_SIZE)
    a("s_mov_b32 s24, 0\ns_mov_b32 s25, 0\ns_cmp_ge_u32 s2, 192\ns_cbranch_scc1 k1_ffn")
    srd(a, 8, 42, D*3*D*2)
    a(f"""
    s_mul_hi_u32 s17, s2, {(2**32+11)//12}
    s_mul_i32 s19, s17, 12
    s_sub_u32 s19, s2, s19
    s_lshl_b32 s17, s17, 7
    s_mul_i32 s18, s19, 288
    s_mov_b32 s33, {3*D*2}
    s_mov_b32 s34, {WS_QKV}
    """)
    setup_A_lds(a, D*2); setup_B(a, 3*D*2); setup_tr(a)
    engine(a, 9, D*2, 3*D*2, True)
    store_epi(a, False, False)
    a("s_branch k1_done")
    a.label("k1_ffn")
    srd(a, 8, 44, D*DFF*2)
    a(f"""
    s_sub_u32 s3, s2, 192
    s_and_b32 s19, s3, 31
    s_lshr_b32 s17, s3, 5
    s_lshl_b32 s17, s17, 7
    s_mul_i32 s18, s19, 288
    s_mov_b32 s33, {DFF*2}
    s_mov_b32 s34, {WS_H}
    """)
    setup_A_lds(a, D*2); setup_B(a, DFF*2); setup_tr(a)
    engine(a, 9, D*2, DFF*2, True)
    store_epi(a, True, False)
    a.label("k1_done")
    a("s_endpgm")

def phi(a, v, t1, t2):
    a(f"""
    v_add_f32 {t1}, 1.0, {v}
    v_mul_f32 {t2}, 0x3fb8aa3b, {v}
    v_exp_f32 {t2}, {t2}
    v_cmp_lt_f32 vcc, 0, {v}
    v_cndmask_b32 {v}, {t2}, {t1}, vcc
    v_cvt_pk_bf16_f32 {v}, {v}, {v}
    v_lshlrev_b32 {v}, 16, {v}
    v_add_f32 {v}, 0x358637bd, {v}
    v_cvt_pk_bf16_f32 {v}, {v}, {v}
    v_lshlrev_b32 {v}, 16, {v}
    """)

def gen_kkv(a):
    kstart(a, "kkv_kernel")
    a(f"""
    s_load_dwordx2 s[46:47], s[0:1], 72
    s_cmp_ge_u32 s2, 512
    s_cbranch_scc1 kkv_done
    s_waitcnt lgkmcnt(0)
    """)
    srd(a, 12, 46, WS_SIZE)
    a(f"""
    s_lshr_b32 s4, s2, 4
    s_and_b32 s5, s2, 15
    v_lshrrev_b32 v1, 1, v0
    v_and_b32 v2, 1, v0
    s_lshl_b32 s6, s5, 7
    v_add_u32 v3, s6, v1
    s_movk_i32 s7, {3*D*2}
    v_mul_lo_u32 v3, v3, s7
    s_mul_i32 s8, s4, 36
    s_add_u32 s8, s8, {WS_QKV + D*2}
    v_add_u32 v3, s8, v3
    v_mul_u32_u24 v4, {D*2}, v2
    v_add_u32 v3, v3, v4
    """)
    for i in range(9):
        a(f"buffer_load_dword v{16+i}, v3, s[12:15], 0 offen offset:{4*i}")
    a(f"""
    v_mul_u32_u24 v5, 144, v1
    v_mul_u32_u24 v6, 72, v2
    v_add_u32 v5, v5, v6
    v_cmp_eq_u32 s[20:21], 0, v2
    s_waitcnt vmcnt(0)
    """)
    for i in range(9):
        for hi in range(2):
            a(f"v_lshlrev_b32 v30, 16, v{16+i}" if hi == 0 else f"v_and_b32 v30, 0xffff0000, v{16+i}")
            a("v_mov_b32 v31, v30")
            phi(a, "v31", "v32", "v33")
            a(f"v_cndmask_b32 v30, v30, v31, s[20:21]")
            a(f"ds_write_b32 v5, v30 offset:{(2*i+hi)*4}")
    a("s_waitcnt lgkmcnt(0)\ns_barrier")
    for rep in range(2):
        a(f"""
        v_add_u32 v7, {256*rep}, v0
        s_movk_i32 s7, 3641
        v_mul_lo_u32 v8, v7, s7
        v_lshrrev_b32 v8, 16, v8
        v_mul_u32_u24 v9, 18, v8
        v_sub_u32 v9, v7, v9
        v_cmp_gt_u32 vcc, 324, v7
        v_cndmask_b32 v8, v9, v8, vcc
        v_lshlrev_b32 v8, 2, v8
        v_lshlrev_b32 v9, 2, v9
        v_add_u32 v9, 72, v9
        v_mov_b32 v10, 0
        s_mov_b32 s10, 0
        """)
        L = a.newlabel("kvL")
        a.label(L)
        a(f"""
        ds_read_b32 v11, v8
        ds_read_b32 v12, v9
        v_add_u32 v8, 144, v8
        v_add_u32 v9, 144, v9
        s_waitcnt lgkmcnt(0)
        v_cndmask_b32 v12, 1.0, v12, vcc
        v_fmac_f32 v10, v11, v12
        s_add_u32 s10, s10, 1
        s_cmp_lt_u32 s10, 128
        s_cbranch_scc1 {L}
        s_mul_i32 s11, s2, 1368
        s_add_u32 s11, s11, {WS_KVP}
        v_lshlrev_b32 v13, 2, v7
        v_add_u32 v13, s11, v13
        v_cmp_gt_u32 vcc, 342, v7
        s_and_saveexec_b64 s[24:25], vcc
        buffer_store_dword v10, v13, s[12:15], 0 offen
        s_mov_b64 exec, s[24:25]
        """)
    a.label("kkv_done")
    a("s_endpgm")

def gen_kred(a):
    kstart(a, "kred_kernel")
    a(f"""
    s_load_dwordx2 s[46:47], s[0:1], 72
    s_cmp_ge_u32 s2, 32
    s_cbranch_scc1 kred_done
    s_waitcnt lgkmcnt(0)
    """)
    srd(a, 12, 46, WS_SIZE)
    for rep in range(2):
        a(f"""
        v_add_u32 v7, {256*rep}, v0
        s_mul_i32 s11, s2, {16*1368}
        s_add_u32 s11, s11, {WS_KVP}
        v_lshlrev_b32 v13, 2, v7
        v_add_u32 v13, s11, v13
        """)
        for i in range(16):
            a(f"s_movk_i32 s9, {1368*i}\nbuffer_load_dword v{16+i}, v13, s[12:15], s9 offen")
        a("s_waitcnt vmcnt(0)")
        for i in range(1, 16):
            a(f"v_add_f32 v16, v16, v{16+i}")
        a(f"""
        v_cvt_pk_bf16_f32 v16, v16, v16
        v_lshlrev_b32 v16, 16, v16
        s_mul_i32 s11, s2, 1368
        s_add_u32 s11, s11, {WS_KVF}
        v_lshlrev_b32 v13, 2, v7
        v_add_u32 v13, s11, v13
        v_cmp_gt_u32 vcc, 342, v7
        s_and_saveexec_b64 s[24:25], vcc
        buffer_store_dword v16, v13, s[12:15], 0 offen
        s_mov_b64 exec, s[24:25]
        """)
    a.label("kred_done")
    a("s_endpgm")

def bfr(a, v):
    a(f"v_cvt_pk_bf16_f32 {v}, {v}, {v}\nv_lshlrev_b32 {v}, 16, {v}")

def gen_ko(a):
    kstart(a, "ko_kernel")
    a(f"""
    s_load_dwordx2 s[46:47], s[0:1], 72
    s_cmp_ge_u32 s2, 256
    s_cbranch_scc1 ko_done
    v_lshrrev_b32 v2, 6, v0
    v_and_b32 v1, 63, v0
    s_nop 0
    v_readfirstlane_b32 s16, v2
    s_and_b32 s4, s2, 7
    s_lshl_b32 s4, s4, 2
    s_add_u32 s4, s4, s16
    s_lshr_b32 s5, s2, 3
    s_lshl_b32 s5, s5, 6
    s_waitcnt lgkmcnt(0)
    """)
    srd(a, 12, 46, WS_SIZE)
    a(f"""
    s_mul_i32 s6, s4, 1368
    s_add_u32 s6, s6, {WS_KVF}
    s_add_u32 s20, s46, s6
    s_addc_u32 s21, s47, 0
    v_add_u32 v3, s5, v1
    s_movk_i32 s7, {3*D*2}
    v_mul_lo_u32 v3, v3, s7
    s_mul_i32 s8, s4, 36
    s_add_u32 s8, s8, {WS_QKV}
    v_add_u32 v3, s8, v3
    """)
    for i in range(9):
        a(f"buffer_load_dword v{16+i}, v3, s[12:15], 0 offen offset:{4*i}")
    a("s_waitcnt vmcnt(0)")
    for i in range(9):
        a(f"v_lshlrev_b32 v{32+2*i}, 16, v{16+i}\nv_and_b32 v{33+2*i}, 0xffff0000, v{16+i}")
    for d in range(18):
        phi(a, f"v{32+d}", "v60", "v61")
    a("s_load_dwordx16 s[48:63], s[20:21], 1296\ns_load_dwordx2 s[64:65], s[20:21], 1360\nv_mov_b32 v62, 0\ns_waitcnt lgkmcnt(0)")
    for d in range(18):
        a(f"v_fmac_f32 v62, s{48+d}, v{32+d}")
    bfr(a, "v62")
    a("v_add_f32 v62, 0x358637bd, v62")
    bfr(a, "v62")
    a("v_rcp_f32 v63, v62")
    for e in range(18):
        a(f"v_mov_b32 v{64+e}, 0")
    for d in range(18):
        a(f"s_load_dwordx16 s[48:63], s[20:21], {d*72}\ns_load_dwordx2 s[64:65], s[20:21], {d*72+64}\ns_waitcnt lgkmcnt(0)")
        for e in range(18):
            a(f"v_fmac_f32 v{64+e}, s{48+e}, v{32+d}")
    for e in range(18):
        bfr(a, f"v{64+e}")
        a(f"v_mul_f32 v{64+e}, v{64+e}, v63")
    a(f"""
    v_add_u32 v3, s5, v1
    s_movk_i32 s7, {D*2}
    v_mul_lo_u32 v3, v3, s7
    s_mul_i32 s8, s4, 36
    s_add_u32 s8, s8, {WS_O2}
    v_add_u32 v3, s8, v3
    """)
    for i in range(9):
        a(f"v_cvt_pk_bf16_f32 v{16+i}, v{64+2*i}, v{65+2*i}\nbuffer_store_dword v{16+i}, v3, s[12:15], 0 offen offset:{4*i}")
    a.label("ko_done")
    a("s_endpgm")

def gen_k2(a):
    kstart(a, "k2_kernel")
    a("""
    s_load_dwordx2 s[40:41], s[0:1], 16
    s_load_dwordx2 s[44:45], s[0:1], 40
    s_load_dwordx2 s[46:47], s[0:1], 72
    s_cmp_ge_u32 s2, 256
    s_cbranch_scc1 k2_done
    """)
    setup_lane_common(a)
    a("s_waitcnt lgkmcnt(0)")
    srd(a, 4, 46, WS_SIZE); srd(a, 12, 46, WS_SIZE)
    a(f"""
    s_lshr_b32 s3, s2, 2
    s_and_b32 s19, s3, 3
    s_lshr_b32 s17, s3, 2
    s_lshl_b32 s17, s17, 7
    s_mul_i32 s18, s19, 288
    s_and_b32 s35, s2, 3
    s_mov_b32 s33, {D*4}
    s_mul_i32 s34, s35, {S*D*4}
    s_add_u32 s34, s34, {WS_PART}
    s_cmp_eq_u32 s35, 3
    s_cbranch_scc1 k2_att
    """)
    srd(a, 8, 44, D*DFF*2)
    a(f"s_mul_i32 s24, s35, 3072\ns_mul_i32 s25, s35, {1536*D*2}")
    setup_A_lds(a, DFF*2); setup_B(a, D*2); setup_tr(a)
    engine(a, 24, DFF*2, D*2, True)
    a("s_lshl_b32 s18, s18, 1")
    store_epi(a, False, True)
    a("s_branch k2_done")
    a.label("k2_att")
    srd(a, 8, 40, D*D*2)
    a(f"s_mov_b32 s24, {WS_O2}\ns_mov_b32 s25, 0")
    setup_A_lds(a, D*2); setup_B(a, D*2); setup_tr(a)
    engine(a, 9, D*2, D*2, True)
    a("s_lshl_b32 s18, s18, 1")
    store_epi(a, False, True)
    a.label("k2_done")
    a("s_endpgm")

def gen_kfin(a):
    kstart(a, "kfin_kernel")
    a("""
    s_load_dwordx2 s[40:41], s[0:1], 0
    s_load_dwordx2 s[42:43], s[0:1], 48
    s_load_dwordx2 s[44:45], s[0:1], 56
    s_load_dwordx2 s[46:47], s[0:1], 72
    s_cmp_ge_u32 s2, 512
    s_cbranch_scc1 kfin_done
    v_lshrrev_b32 v2, 6, v0
    v_and_b32 v1, 63, v0
    s_nop 0
    v_readfirstlane_b32 s16, v2
    s_lshl_b32 s4, s2, 2
    s_add_u32 s4, s4, s16
    s_waitcnt lgkmcnt(0)
    """)
    srd(a, 4+4, 40, S*D*2); srd(a, 20, 42, D*2); srd(a, 24, 44, S*D*2); srd(a, 12, 46, WS_SIZE)
    a(f"""
    v_lshlrev_b32 v3, 1, v1
    s_mul_i32 s5, s4, {D*2}
    s_mul_i32 s6, s4, {D*4}
    s_add_u32 s6, s6, {WS_PART}
    v_lshlrev_b32 v4, 2, v1
    v_mov_b32 v5, 0
    """)
    for i in range(9):
        a(f"buffer_load_ushort v{16+i}, v3, s[8:11], s5 offen offset:{128*i}\nbuffer_load_ushort v{32+i}, v3, s[20:23], 0 offen offset:{128*i}")
    a("s_waitcnt vmcnt(0)")
    for i in range(9):
        a(f"v_lshlrev_b32 v{16+i}, 16, v{16+i}\nv_lshlrev_b32 v{32+i}, 16, v{32+i}\nv_mul_f32 v{16+i}, v{16+i}, v{32+i}")
        bfr(a, f"v{16+i}")
        a(f"v_add_f32 v5, v5, v{16+i}")
    for off in (1, 2, 4, 8, 16, 32):
        a(f"v_xor_b32 v6, {off*4}, v4\nds_bpermute_b32 v7, v6, v5\ns_waitcnt lgkmcnt(0)\nv_add_f32 v5, v5, v7")
    bfr(a, "v5")
    a("v_mul_f32 v5, 0xbfb8aa3b, v5\nv_exp_f32 v5, v5\ns_nop 0\nv_add_f32 v5, 1.0, v5\nv_rcp_f32 v5, v5\ns_nop 0")
    bfr(a, "v5")
    a("v_sub_f32 v6, 1.0, v5")
    bfr(a, "v6")
    for i in range(9):
        for q in range(4):
            a(f"s_add_u32 s7, s6, {q*S*D*4}\nbuffer_load_dword v{16+4*i+q}, v4, s[12:15], s7 offen offset:{256*i}")
    a("s_waitcnt vmcnt(0)")
    for i in range(9):
        b = 16 + 4 * i
        a(f"v_add_f32 v{b}, v{b}, v{b+1}\nv_add_f32 v{b}, v{b}, v{b+2}")
        bfr(a, f"v{b}"); bfr(a, f"v{b+3}")
        a(f"v_mul_f32 v{b}, v{b}, v6\nv_mul_f32 v{b+3}, v{b+3}, v5")
        bfr(a, f"v{b}"); bfr(a, f"v{b+3}")
        a(f"v_add_f32 v{b}, v{b}, v{b+3}\nv_cvt_pk_bf16_f32 v{b}, v{b}, v{b}\nbuffer_store_short v{b}, v3, s[24:27], s5 offen offset:{128*i}")
    a.label("kfin_done")
    a("s_endpgm")

def descriptor(name, vgpr, accum):
    return f""".amdhsa_kernel {name}
  .amdhsa_next_free_vgpr {vgpr}
  .amdhsa_next_free_sgpr 96
  .amdhsa_accum_offset {accum}
  .amdhsa_group_segment_fixed_size 0
  .amdhsa_kernarg_size 80
  .amdhsa_user_sgpr_count 2
  .amdhsa_user_sgpr_kernarg_segment_ptr 1
  .amdhsa_system_sgpr_workgroup_id_x 1
.end_amdhsa_kernel
"""

def main():
    a = Asm()
    hdr = """; generated by gen/gen.py
; @launch kernel=k1_kernel grid=(704,1,1) block=(256,1,1) lds=69632
; @launch kernel=kkv_kernel grid=(512,1,1) block=(256,1,1) lds=18432
; @launch kernel=kred_kernel grid=(32,1,1) block=(256,1,1) lds=0
; @launch kernel=ko_kernel grid=(256,1,1) block=(256,1,1) lds=0
; @launch kernel=k2_kernel grid=(256,1,1) block=(256,1,1) lds=69632
; @launch kernel=kfin_kernel grid=(512,1,1) block=(256,1,1) lds=0
.amdgcn_target "amdgcn-amd-amdhsa--gfx950"
.text
"""
    gen_k1(a); gen_kkv(a); gen_kred(a); gen_ko(a); gen_k2(a); gen_kfin(a)
    out = hdr + a.text() + '.section .rodata,"a"\n'
    for k in ("k1", "k2"):
        out += ".p2align 6\n" + descriptor(k + "_kernel", 184, 112)
    for k in ("kkv", "kred", "ko", "kfin"):
        out += ".p2align 6\n" + descriptor(k + "_kernel", 96, 96)
    open(sys.argv[1] if len(sys.argv) > 1 else f"cdna_kernels/{NAME}.s", "w").write(out)

main()
```

```python
import sys, os
from emit import Asm
DBG = os.environ.get('GDBG','')

NAME = "gated_mix__linear_attn_block__dense_activation_relu__prompt"
S, D, DFF, H, DH = 2048, 576, 4608, 32, 18
WS_H    = 0x0000000
WS_PQ   = 0x1400000
WS_G    = 0x1800000
WS_KVP  = 0x1B40000
WS_KVZ  = 0x1C00000
WS_O    = 0x2000000
WS_PART = 0x3000000
WS_SIZE = 0x10000000

BSTAGE = 18432
PF = 4
NBF = 6
VB = 80
VA = 16

def setup_lane_common(a):
    a("""
    v_and_b32 v1, 63, v0
    v_lshrrev_b32 v11, 6, v0
    s_nop 0
    v_readfirstlane_b32 s16, v11
    """)

def setup_A(a, strideA):
    a(f"""
    v_and_b32 v11, 15, v1
    s_lshl_b32 s22, s16, 5
    s_add_u32 s22, s22, s17
    v_add_u32 v11, s22, v11
    s_mov_b32 s23, {strideA}
    v_mul_lo_u32 v2, v11, s23
    v_lshrrev_b32 v12, 4, v1
    v_lshlrev_b32 v12, 4, v12
    v_add_u32 v2, v2, v12
    v_add_u32 v3, {16*strideA}, v2
    """)

def setup_B(a, strideB, split=None):
    for j in range(5):
        a(f"""
        s_mul_i32 s22, s16, 288
        s_add_u32 s22, s22, {64*j}
        v_add_u32 v11, s22, v1
        s_movk_i32 s23, 3641
        v_mul_lo_u32 v12, v11, s23
        v_lshrrev_b32 v12, 16, v12
        v_mul_u32_u24 v13, 18, v12
        v_sub_u32 v13, v11, v13
        v_lshrrev_b32 v14, 3, v12
        v_and_b32 v14, 1, v14
        v_lshlrev_b32 v14, 2, v14
        v_xor_b32 v12, v12, v14
        s_mov_b32 s23, {strideB}
        v_mul_lo_u32 v12, v12, s23
        v_lshlrev_b32 v14, 4, v13
        v_add_u32 v12, v12, v14
        """)
        if split is not None:
            a(f"""
            v_mov_b32 v14, {split}
            v_cmp_lt_u32 vcc, 8, v13
            v_cndmask_b32 v14, 0, v14, vcc
            v_add_u32 v12, v12, v14
            """)
        a(f"v_add_u32 v{4+j}, s18, v12")

def setup_tr(a):
    a("""
    v_lshrrev_b32 v11, 4, v1
    v_and_b32 v12, 15, v1
    v_lshrrev_b32 v13, 2, v12
    v_and_b32 v14, 3, v12
    v_and_b32 v15, 1, v11
    v_lshlrev_b32 v15, 2, v15
    v_lshlrev_b32 v11, 3, v11
    v_add_u32 v11, v11, v13
    v_add_u32 v12, v11, v15
    v_mul_u32_u24 v12, 288, v12
    v_lshlrev_b32 v14, 3, v14
    v_add_u32 v9, v12, v14
    v_xor_b32 v15, 4, v15
    v_add_u32 v12, v11, v15
    v_mul_u32_u24 v12, 288, v12
    v_add_u32 v10, v12, v14
    """)

def issue_A(a, st, setidx):
    base = VA + 16 * setidx
    if 'noA' in DBG:
        for i in range(4): a("buffer_load_dword v15, v2, s[4:7], s24 offen")
        return
    for rt in range(2):
        for ks in range(2):
            r = base + (rt * 2 + ks) * 4
            a(f"buffer_load_dwordx4 v[{r}:{r+3}], v{2+rt}, s[4:7], s24 offen offset:{ks*64}")
    a("s_add_u32 s24, s24, 128")

def issue_DMA(a, st, strideB):
    buf = st % 3
    for j in range(5):
        a(f"s_add_u32 m0, s26, {buf*BSTAGE + j*1024}")
        if j == 4:
            a("s_mov_b64 exec, 0xffffffff")
        else:
            a("s_nop 0")
        a(f"buffer_load_dwordx4 v{4+j}, s[8:11], s25 offen lds" if 'noB' not in DBG else "buffer_load_dword v15, v2, s[4:7], s24 offen")
        if j == 4:
            a("s_mov_b64 exec, -1")
    a(f"s_add_u32 s25, s25, {64*strideB}")

ASTAGE = 16384
LDS_A = 2 * BSTAGE

def setup_A_lds(a, strideA):
    a(f"""
    v_lshrrev_b32 v11, 3, v1
    s_lshl_b32 s22, s16, 5
    s_add_u32 s22, s22, s17
    v_add_u32 v12, s22, v11
    s_mov_b32 s23, {strideA}
    v_mul_lo_u32 v2, v12, s23
    v_lshrrev_b32 v12, 1, v11
    v_and_b32 v12, 7, v12
    v_and_b32 v13, 7, v1
    v_xor_b32 v12, v12, v13
    v_lshlrev_b32 v12, 4, v12
    v_xor_b32 v13, 64, v12
    v_add_u32 v105, v2, v13
    v_add_u32 v2, v2, v12
    v_and_b32 v11, 15, v1
    v_lshrrev_b32 v12, 4, v1
    v_lshrrev_b32 v13, 1, v11
    v_and_b32 v13, 7, v13
    v_xor_b32 v14, v12, v13
    v_lshlrev_b32 v14, 4, v14
    v_xor_b32 v15, 4, v12
    v_xor_b32 v15, v15, v13
    v_lshlrev_b32 v15, 4, v15
    s_lshl_b32 s22, s16, 12
    v_lshlrev_b32 v11, 7, v11
    v_add_u32 v11, s22, v11
    v_add_u32 v3, v11, v14
    v_add_u32 v104, v11, v15
    """)

def issue_stage(a, buf, strideA, strideB):
    a("s_cmp_gt_i32 s28, 0")
    a("s_cselect_b32 s22, s25, s29")
    a("s_cselect_b32 s23, s24, s29")
    for j in range(4):
        a(f"s_add_u32 m0, s31, {LDS_A + buf*ASTAGE + j*1024}")
        a(f"s_add_u32 s27, s23, {j*8*strideA}")
        a(f"buffer_load_dwordx4 v{2 if j%2==0 else 105}, s[4:7], s27 offen lds")
    for j in range(5):
        a(f"s_add_u32 m0, s26, {buf*BSTAGE + j*1024}")
        if j == 4:
            a("s_mov_b64 exec, 0xffffffff")
        else:
            a("s_nop 0")
        a(f"buffer_load_dwordx4 v{4+j}, s[8:11], s22 offen lds")
        if j == 4:
            a("s_mov_b64 exec, -1")
    a(f"s_add_u32 s25, s25, {64*strideB}")
    a("s_add_u32 s24, s24, 128")
    a("s_sub_u32 s28, s28, 1")

def engine(a, nst, strideA, strideB, swap):
    for i in range(72):
        a(f"v_accvgpr_write_b32 a{i}, 0")
    a(f"""
    s_mul_i32 s26, s16, 4608
    s_lshl_b32 s31, s16, 12
    s_mov_b32 s29, 0x7ffffff0
    s_mov_b32 s28, {nst}
    s_mov_b32 s30, {nst}
    """)
    issue_stage(a, 0, strideA, strideB)
    loop = a.newlabel("Lloop")
    lend = a.newlabel("Lend")
    a.label(loop)
    for st in range(2):
        a("s_waitcnt vmcnt(0)")
        a("s_barrier")
        issue_stage(a, 1 - st, strideA, strideB)
        buf = st
        for rt in range(2):
            for ks in range(2):
                r = VA + (rt * 2 + ks) * 4
                a(f"ds_read_b128 v[{r}:{r+3}], v{3 if ks == 0 else 104} offset:{LDS_A + buf*ASTAGE + rt*2048}")
        def rd(f):
            ks, t = divmod(f, 9)
            r = VB + (f % NBF) * 4
            off = buf * BSTAGE + ks * 9216 + t * 32
            a(f"ds_read_b64_tr_b16 v[{r}:{r+1}], v9 offset:{off}")
            a(f"ds_read_b64_tr_b16 v[{r+2}:{r+3}], v10 offset:{off}")
        for f in range(PF):
            rd(f)
        for f in range(18):
            if f + PF < 18:
                rd(f + PF)
            a(f"s_waitcnt lgkmcnt({2*min(PF, 17-f)})")
            ks, t = divmod(f, 9)
            r = VB + (f % NBF) * 4
            for rt in range(2):
                ar = VA + (rt * 2 + ks) * 4
                c = (rt * 9 + t) * 4
                if swap:
                    a(f"v_mfma_f32_16x16x32_bf16 a[{c}:{c+3}], v[{r}:{r+3}], v[{ar}:{ar+3}], a[{c}:{c+3}]")
                else:
                    a(f"v_mfma_f32_16x16x32_bf16 a[{c}:{c+3}], v[{ar}:{ar+3}], v[{r}:{r+3}], a[{c}:{c+3}]")
        a("s_sub_u32 s30, s30, 1")
        a("s_cmp_eq_u32 s30, 0")
        a(f"s_cbranch_scc1 {lend}" if st < 1 else f"s_cbranch_scc0 {loop}")
    a.label(lend)
    a("s_waitcnt vmcnt(0)")

WS_QKV = 0x1400000
WS_KVF = 0x1C00000
WS_O2  = 0x2000000

def kstart(a, name):
    a.raw(f".globl {name}\n.p2align 8\n.type {name},@function")
    a.label(name)

def store_epi(a, relu, f32part):
    a(f"""
    s_nop 7
    s_nop 7
    v_and_b32 v11, 15, v1
    s_lshl_b32 s22, s16, 5
    s_add_u32 s22, s22, s17
    v_add_u32 v11, s22, v11
    v_mul_lo_u32 v12, v11, s33
    v_lshrrev_b32 v13, 4, v1
    v_lshlrev_b32 v13, {4 if f32part else 3}, v13
    v_add_u32 v12, v12, v13
    v_add_u32 v12, s18, v12
    v_add_u32 v12, s34, v12
    s_lshl_b32 s22, s33, 4
    v_add_u32 v13, s22, v12
    """)
    for rt in range(2):
        for t in range(9):
            c = (rt * 9 + t) * 4
            b = 16 + 8 * (t % 4)
            a(f"""
            s_nop 1
            v_accvgpr_read_b32 v{b}, a{c}
            v_accvgpr_read_b32 v{b+1}, a{c+1}
            v_accvgpr_read_b32 v{b+2}, a{c+2}
            v_accvgpr_read_b32 v{b+3}, a{c+3}
            """)
            if f32part:
                a(f"buffer_store_dwordx4 v[{b}:{b+3}], v{12+rt}, s[12:15], 0 offen offset:{t*64}")
                continue
            if relu:
                for i in range(4): a(f"v_max_f32 v{b+i}, 0, v{b+i}")
            a(f"""
            v_cvt_pk_bf16_f32 v{b+4}, v{b}, v{b+1}
            v_cvt_pk_bf16_f32 v{b+5}, v{b+2}, v{b+3}
            buffer_store_dwordx2 v[{b+4}:{b+5}], v{12+rt}, s[12:15], 0 offen offset:{t*32}
            """)

def srd(a, d, lo, size):
    a(f"s_mov_b32 s{d}, s{lo}\ns_mov_b32 s{d+1}, s{lo+1}\ns_mov_b32 s{d+2}, {size}\ns_mov_b32 s{d+3}, 0x00020000")

def gen_k1(a):
    kstart(a, "k1_kernel")
    a("""
    s_load_dwordx4 s[40:43], s[0:1], 0
    s_load_dwordx2 s[44:45], s[0:1], 32
    s_load_dwordx2 s[46:47], s[0:1], 72
    s_cmp_ge_u32 s2, 704
    s_cbranch_scc1 k1_done
    """)
    setup_lane_common(a)
    a("s_waitcnt lgkmcnt(0)")
    srd(a, 4, 40, S*D*2); srd(a, 12, 46, WS_SIZE)
    a("s_mov_b32 s24, 0\ns_mov_b32 s25, 0\ns_cmp_ge_u32 s2, 192\ns_cbranch_scc1 k1_ffn")
    srd(a, 8, 42, D*3*D*2)
    a(f"""
    s_mul_hi_u32 s17, s2, {(2**32+11)//12}
    s_mul_i32 s19, s17, 12
    s_sub_u32 s19, s2, s19
    s_lshl_b32 s17, s17, 7
    s_mul_i32 s18, s19, 288
    s_mov_b32 s33, {3*D*2}
    s_mov_b32 s34, {WS_QKV}
    """)
    setup_A_lds(a, D*2); setup_B(a, 3*D*2); setup_tr(a)
    engine(a, 9, D*2, 3*D*2, True)
    store_epi(a, False, False)
    a("s_branch k1_done")
    a.label("k1_ffn")
    srd(a, 8, 44, D*DFF*2)
    a(f"""
    s_sub_u32 s3, s2, 192
    s_and_b32 s19, s3, 31
    s_lshr_b32 s17, s3, 5
    s_lshl_b32 s17, s17, 7
    s_mul_i32 s18, s19, 288
    s_mov_b32 s33, {DFF*2}
    s_mov_b32 s34, {WS_H}
    """)
    setup_A_lds(a, D*2); setup_B(a, DFF*2); setup_tr(a)
    engine(a, 9, D*2, DFF*2, True)
    store_epi(a, True, False)
    a.label("k1_done")
    a("s_endpgm")

def phi(a, v, t1, t2):
    a(f"""
    v_add_f32 {t1}, 1.0, {v}
    v_mul_f32 {t2}, 0x3fb8aa3b, {v}
    v_exp_f32 {t2}, {t2}
    v_cmp_lt_f32 vcc, 0, {v}
    v_cndmask_b32 {v}, {t2}, {t1}, vcc
    v_cvt_pk_bf16_f32 {v}, {v}, {v}
    v_lshlrev_b32 {v}, 16, {v}
    v_add_f32 {v}, 0x358637bd, {v}
    v_cvt_pk_bf16_f32 {v}, {v}, {v}
    v_lshlrev_b32 {v}, 16, {v}
    """)

def gen_kkv(a):
    kstart(a, "kkv_kernel")
    a(f"""
    s_load_dwordx2 s[46:47], s[0:1], 72
    s_cmp_ge_u32 s2, 512
    s_cbranch_scc1 kkv_done
    s_waitcnt lgkmcnt(0)
    """)
    srd(a, 12, 46, WS_SIZE)
    a(f"""
    s_lshr_b32 s4, s2, 4
    s_and_b32 s5, s2, 15
    v_lshrrev_b32 v1, 1, v0
    v_and_b32 v2, 1, v0
    s_lshl_b32 s6, s5, 7
    v_add_u32 v3, s6, v1
    s_movk_i32 s7, {3*D*2}
    v_mul_lo_u32 v3, v3, s7
    s_mul_i32 s8, s4, 36
    s_add_u32 s8, s8, {WS_QKV + D*2}
    v_add_u32 v3, s8, v3
    v_mul_u32_u24 v4, {D*2}, v2
    v_add_u32 v3, v3, v4
    """)
    for i in range(9):
        a(f"buffer_load_dword v{16+i}, v3, s[12:15], 0 offen offset:{4*i}")
    a(f"""
    v_mul_u32_u24 v5, 144, v1
    v_mul_u32_u24 v6, 72, v2
    v_add_u32 v5, v5, v6
    v_cmp_eq_u32 s[20:21], 0, v2
    s_waitcnt vmcnt(0)
    """)
    for i in range(9):
        for hi in range(2):
            a(f"v_lshlrev_b32 v30, 16, v{16+i}" if hi == 0 else f"v_and_b32 v30, 0xffff0000, v{16+i}")
            a("v_mov_b32 v31, v30")
            phi(a, "v31", "v32", "v33")
            a(f"v_cndmask_b32 v30, v30, v31, s[20:21]")
            a(f"ds_write_b32 v5, v30 offset:{(2*i+hi)*4}")
    a("s_waitcnt lgkmcnt(0)\ns_barrier")
    for rep in range(2):
        a(f"""
        v_add_u32 v7, {256*rep}, v0
        s_movk_i32 s7, 3641
        v_mul_lo_u32 v8, v7, s7
        v_lshrrev_b32 v8, 16, v8
        v_mul_u32_u24 v9, 18, v8
        v_sub_u32 v9, v7, v9
        v_cmp_gt_u32 vcc, 324, v7
        v_cndmask_b32 v8, v9, v8, vcc
        v_lshlrev_b32 v8, 2, v8
        v_lshlrev_b32 v9, 2, v9
        v_add_u32 v9, 72, v9
        v_mov_b32 v10, 0
        s_mov_b32 s10, 0
        """)
        L = a.newlabel("kvL")
        a.label(L)
        for u in range(8):
            a(f"ds_read_b32 v{40+u}, v8 offset:{144*u}\nds_read_b32 v{48+u}, v9 offset:{144*u}")
        a("v_add_u32 v8, 1152, v8\nv_add_u32 v9, 1152, v9\ns_waitcnt lgkmcnt(0)")
        for u in range(8):
            a(f"v_cndmask_b32 v{48+u}, 1.0, v{48+u}, vcc\nv_fmac_f32 v10, v{40+u}, v{48+u}")
        a(f"""
        s_add_u32 s10, s10, 8
        s_cmp_lt_u32 s10, 128
        s_cbranch_scc1 {L}
        s_mul_i32 s11, s2, 1368
        s_add_u32 s11, s11, {WS_KVP}
        v_lshlrev_b32 v13, 2, v7
        v_add_u32 v13, s11, v13
        v_cmp_gt_u32 vcc, 342, v7
        s_and_saveexec_b64 s[24:25], vcc
        buffer_store_dword v10, v13, s[12:15], 0 offen
        s_mov_b64 exec, s[24:25]
        """)
    a.label("kkv_done")
    a("s_endpgm")

def gen_kred(a):
    kstart(a, "kred_kernel")
    a(f"""
    s_load_dwordx2 s[46:47], s[0:1], 72
    s_cmp_ge_u32 s2, 32
    s_cbranch_scc1 kred_done
    s_waitcnt lgkmcnt(0)
    """)
    srd(a, 12, 46, WS_SIZE)
    for rep in range(2):
        a(f"""
        v_add_u32 v7, {256*rep}, v0
        s_mul_i32 s11, s2, {16*1368}
        s_add_u32 s11, s11, {WS_KVP}
        v_lshlrev_b32 v13, 2, v7
        v_add_u32 v13, s11, v13
        """)
        for i in range(16):
            a(f"s_movk_i32 s9, {1368*i}\nbuffer_load_dword v{16+i}, v13, s[12:15], s9 offen")
        a("s_waitcnt vmcnt(0)")
        for i in range(1, 16):
            a(f"v_add_f32 v16, v16, v{16+i}")
        a(f"""
        v_cvt_pk_bf16_f32 v16, v16, v16
        v_lshlrev_b32 v16, 16, v16
        s_mul_i32 s11, s2, 1368
        s_add_u32 s11, s11, {WS_KVF}
        v_lshlrev_b32 v13, 2, v7
        v_add_u32 v13, s11, v13
        v_cmp_gt_u32 vcc, 342, v7
        s_and_saveexec_b64 s[24:25], vcc
        buffer_store_dword v16, v13, s[12:15], 0 offen
        s_mov_b64 exec, s[24:25]
        """)
    a.label("kred_done")
    a("s_endpgm")

def bfr(a, v):
    a(f"v_cvt_pk_bf16_f32 {v}, {v}, {v}\nv_lshlrev_b32 {v}, 16, {v}")

def gen_ko(a):
    kstart(a, "ko_kernel")
    a(f"""
    s_load_dwordx2 s[46:47], s[0:1], 72
    s_cmp_ge_u32 s2, 256
    s_cbranch_scc1 ko_done
    v_lshrrev_b32 v2, 6, v0
    v_and_b32 v1, 63, v0
    s_nop 0
    v_readfirstlane_b32 s16, v2
    s_and_b32 s4, s2, 7
    s_lshl_b32 s4, s4, 2
    s_add_u32 s4, s4, s16
    s_lshr_b32 s5, s2, 3
    s_lshl_b32 s5, s5, 6
    s_waitcnt lgkmcnt(0)
    """)
    srd(a, 12, 46, WS_SIZE)
    a(f"""
    v_add_u32 v3, s5, v1
    s_movk_i32 s7, {3*D*2}
    v_mul_lo_u32 v3, v3, s7
    s_mul_i32 s8, s4, 36
    s_add_u32 s8, s8, {WS_QKV}
    v_add_u32 v3, s8, v3
    """)
    for i in range(9):
        a(f"buffer_load_dword v{16+i}, v3, s[12:15], 0 offen offset:{4*i}")
    a(f"""
    s_mul_i32 s6, s4, {16*1368}
    s_add_u32 s6, s6, {WS_KVP}
    v_lshlrev_b32 v4, 2, v1
    v_add_u32 v5, s6, v4
    s_mul_i32 s9, s16, 1536
    v_add_u32 v6, s9, v4
    """)
    for c in range(16):
        a(f"s_movk_i32 s9, {1368*c}")
        for i in range(6):
            a(f"buffer_load_dword v{64+6*c+i}, v5, s[12:15], s9 offen offset:{256*i}")
    a("s_waitcnt vmcnt(0)")
    for i in range(6):
        for c in range(1, 16):
            a(f"v_add_f32 v{64+i}, v{64+i}, v{64+6*c+i}")
        bfr(a, f"v{64+i}")
        a(f"ds_write_b32 v6, v{64+i} offset:{256*i}")
    for i in range(9):
        a(f"v_lshlrev_b32 v{32+2*i}, 16, v{16+i}\nv_and_b32 v{33+2*i}, 0xffff0000, v{16+i}")
    for d in range(18):
        phi(a, f"v{32+d}", "v60", "v61")
    a("s_mul_i32 s9, s16, 1536\nv_mov_b32 v7, s9\ns_waitcnt lgkmcnt(0)")
    for j in range(4):
        a(f"ds_read_b128 v[{96+4*j}:{99+4*j}], v7 offset:{1296+16*j}")
    a("ds_read_b64 v[112:113], v7 offset:1360\nv_mov_b32 v62, 0\ns_waitcnt lgkmcnt(0)")
    for d in range(18):
        a(f"v_fmac_f32 v62, v{96+d}, v{32+d}")
    bfr(a, "v62")
    a("v_add_f32 v62, 0x358637bd, v62")
    bfr(a, "v62")
    a("v_rcp_f32 v63, v62")
    for e in range(18):
        a(f"v_mov_b32 v{64+e}, 0")
    for d in range(18):
        b = 96 + 20 * (d % 2)
        for j in range(4):
            a(f"ds_read_b128 v[{b+4*j}:{b+3+4*j}], v7 offset:{72*d+16*j}")
        a(f"ds_read_b64 v[{b+16}:{b+17}], v7 offset:{72*d+64}")
        if d > 0:
            pb = 96 + 20 * ((d - 1) % 2)
            a("s_waitcnt lgkmcnt(5)")
            for e in range(18):
                a(f"v_fmac_f32 v{64+e}, v{pb+e}, v{32+d-1}")
    a("s_waitcnt lgkmcnt(0)")
    for e in range(18):
        a(f"v_fmac_f32 v{64+e}, v{96+20+e}, v{32+17}")
    for e in range(18):
        bfr(a, f"v{64+e}")
        a(f"v_mul_f32 v{64+e}, v{64+e}, v63")
    a(f"""
    v_add_u32 v3, s5, v1
    s_movk_i32 s7, {D*2}
    v_mul_lo_u32 v3, v3, s7
    s_mul_i32 s8, s4, 36
    s_add_u32 s8, s8, {WS_O2}
    v_add_u32 v3, s8, v3
    """)
    for i in range(9):
        a(f"v_cvt_pk_bf16_f32 v{16+i}, v{64+2*i}, v{65+2*i}\nbuffer_store_dword v{16+i}, v3, s[12:15], 0 offen offset:{4*i}")
    a.label("ko_done")
    a("s_endpgm")

def gen_k2(a):
    kstart(a, "k2_kernel")
    a("""
    s_load_dwordx2 s[40:41], s[0:1], 16
    s_load_dwordx2 s[44:45], s[0:1], 40
    s_load_dwordx2 s[46:47], s[0:1], 72
    s_cmp_ge_u32 s2, 256
    s_cbranch_scc1 k2_done
    """)
    setup_lane_common(a)
    a("s_waitcnt lgkmcnt(0)")
    srd(a, 4, 46, WS_SIZE); srd(a, 12, 46, WS_SIZE)
    a(f"""
    s_lshr_b32 s3, s2, 2
    s_and_b32 s19, s3, 3
    s_lshr_b32 s17, s3, 2
    s_lshl_b32 s17, s17, 7
    s_mul_i32 s18, s19, 288
    s_and_b32 s35, s2, 3
    s_mov_b32 s33, {D*4}
    s_mul_i32 s34, s35, {S*D*4}
    s_add_u32 s34, s34, {WS_PART}
    s_cmp_eq_u32 s35, 3
    s_cbranch_scc1 k2_att
    """)
    srd(a, 8, 44, D*DFF*2)
    a(f"s_mul_i32 s24, s35, 3072\ns_mul_i32 s25, s35, {1536*D*2}")
    setup_A_lds(a, DFF*2); setup_B(a, D*2); setup_tr(a)
    engine(a, 24, DFF*2, D*2, True)
    a("s_lshl_b32 s18, s18, 1")
    store_epi(a, False, True)
    a("s_branch k2_done")
    a.label("k2_att")
    srd(a, 8, 40, D*D*2)
    a(f"s_mov_b32 s24, {WS_O2}\ns_mov_b32 s25, 0")
    setup_A_lds(a, D*2); setup_B(a, D*2); setup_tr(a)
    engine(a, 9, D*2, D*2, True)
    a("s_lshl_b32 s18, s18, 1")
    store_epi(a, False, True)
    a.label("k2_done")
    a("s_endpgm")

def gen_kfin(a):
    kstart(a, "kfin_kernel")
    a("""
    s_load_dwordx2 s[40:41], s[0:1], 0
    s_load_dwordx2 s[42:43], s[0:1], 48
    s_load_dwordx2 s[44:45], s[0:1], 56
    s_load_dwordx2 s[46:47], s[0:1], 72
    s_cmp_ge_u32 s2, 512
    s_cbranch_scc1 kfin_done
    v_lshrrev_b32 v2, 6, v0
    v_and_b32 v1, 63, v0
    s_nop 0
    v_readfirstlane_b32 s16, v2
    s_lshl_b32 s4, s2, 2
    s_add_u32 s4, s4, s16
    s_waitcnt lgkmcnt(0)
    """)
    srd(a, 4+4, 40, S*D*2); srd(a, 20, 42, D*2); srd(a, 24, 44, S*D*2); srd(a, 12, 46, WS_SIZE)
    a(f"""
    v_lshlrev_b32 v3, 1, v1
    s_mul_i32 s5, s4, {D*2}
    s_mul_i32 s6, s4, {D*4}
    s_add_u32 s6, s6, {WS_PART}
    v_lshlrev_b32 v4, 2, v1
    v_mov_b32 v5, 0
    """)
    for i in range(9):
        a(f"buffer_load_ushort v{16+i}, v3, s[8:11], s5 offen offset:{128*i}\nbuffer_load_ushort v{32+i}, v3, s[20:23], 0 offen offset:{128*i}")
    a("s_waitcnt vmcnt(0)")
    for i in range(9):
        a(f"v_lshlrev_b32 v{16+i}, 16, v{16+i}\nv_lshlrev_b32 v{32+i}, 16, v{32+i}\nv_mul_f32 v{16+i}, v{16+i}, v{32+i}")
        bfr(a, f"v{16+i}")
        a(f"v_add_f32 v5, v5, v{16+i}")
    for off in (1, 2, 4, 8, 16, 32):
        a(f"v_xor_b32 v6, {off*4}, v4\nds_bpermute_b32 v7, v6, v5\ns_waitcnt lgkmcnt(0)\nv_add_f32 v5, v5, v7")
    bfr(a, "v5")
    a("v_mul_f32 v5, 0xbfb8aa3b, v5\nv_exp_f32 v5, v5\ns_nop 0\nv_add_f32 v5, 1.0, v5\nv_rcp_f32 v5, v5\ns_nop 0")
    bfr(a, "v5")
    a("v_sub_f32 v6, 1.0, v5")
    bfr(a, "v6")
    for i in range(9):
        for q in range(4):
            a(f"s_add_u32 s7, s6, {q*S*D*4}\nbuffer_load_dword v{16+4*i+q}, v4, s[12:15], s7 offen offset:{256*i}")
    a("s_waitcnt vmcnt(0)")
    for i in range(9):
        b = 16 + 4 * i
        a(f"v_add_f32 v{b}, v{b}, v{b+1}\nv_add_f32 v{b}, v{b}, v{b+2}")
        bfr(a, f"v{b}"); bfr(a, f"v{b+3}")
        a(f"v_mul_f32 v{b}, v{b}, v6\nv_mul_f32 v{b+3}, v{b+3}, v5")
        bfr(a, f"v{b}"); bfr(a, f"v{b+3}")
        a(f"v_add_f32 v{b}, v{b}, v{b+3}\nv_cvt_pk_bf16_f32 v{b}, v{b}, v{b}\nbuffer_store_short v{b}, v3, s[24:27], s5 offen offset:{128*i}")
    a.label("kfin_done")
    a("s_endpgm")

def descriptor(name, vgpr, accum):
    return f""".amdhsa_kernel {name}
  .amdhsa_next_free_vgpr {vgpr}
  .amdhsa_next_free_sgpr 96
  .amdhsa_accum_offset {accum}
  .amdhsa_group_segment_fixed_size 0
  .amdhsa_kernarg_size 80
  .amdhsa_user_sgpr_count 2
  .amdhsa_user_sgpr_kernarg_segment_ptr 1
  .amdhsa_system_sgpr_workgroup_id_x 1
.end_amdhsa_kernel
"""

def main():
    a = Asm()
    hdr = """; generated by gen/gen.py
; @launch kernel=k1_kernel grid=(704,1,1) block=(256,1,1) lds=69632
; @launch kernel=kkv_kernel grid=(512,1,1) block=(256,1,1) lds=18432
; @launch kernel=ko_kernel grid=(256,1,1) block=(256,1,1) lds=6144
; @launch kernel=k2_kernel grid=(256,1,1) block=(256,1,1) lds=69632
; @launch kernel=kfin_kernel grid=(512,1,1) block=(256,1,1) lds=0
.amdgcn_target "amdgcn-amd-amdhsa--gfx950"
.text
"""
    gen_k1(a); gen_kkv(a); gen_ko(a); gen_k2(a); gen_kfin(a)
    out = hdr + a.text() + '.section .rodata,"a"\n'
    for k in ("k1", "k2"):
        out += ".p2align 6\n" + descriptor(k + "_kernel", 184, 112)
    for k in ("kkv", "ko", "kfin"):
        out += ".p2align 6\n" + descriptor(k + "_kernel", 168, 168)
    open(sys.argv[1] if len(sys.argv) > 1 else f"cdna_kernels/{NAME}.s", "w").write(out)

main()
```

```python
import sys, os
from emit import Asm
DBG = os.environ.get('GDBG','')

NAME = "gated_mix__linear_attn_block__dense_activation_relu__prompt"
S, D, DFF, H, DH = 2048, 576, 4608, 32, 18
WS_H    = 0x0000000
WS_PQ   = 0x1400000
WS_G    = 0x1800000
WS_KVP  = 0x1B40000
WS_KVZ  = 0x1C00000
WS_O    = 0x2000000
WS_PART = 0x3000000
WS_SIZE = 0x10000000

BSTAGE = 18432
PF = 4
NBF = 6
VB = 80
VA = 16

def setup_lane_common(a):
    a("""
    v_and_b32 v1, 63, v0
    v_lshrrev_b32 v11, 6, v0
    s_nop 0
    v_readfirstlane_b32 s16, v11
    """)

def setup_A(a, strideA):
    a(f"""
    v_and_b32 v11, 15, v1
    s_lshl_b32 s22, s16, 5
    s_add_u32 s22, s22, s17
    v_add_u32 v11, s22, v11
    s_mov_b32 s23, {strideA}
    v_mul_lo_u32 v2, v11, s23
    v_lshrrev_b32 v12, 4, v1
    v_lshlrev_b32 v12, 4, v12
    v_add_u32 v2, v2, v12
    v_add_u32 v3, {16*strideA}, v2
    """)

def setup_B(a, strideB, split=None):
    for j in range(5):
        a(f"""
        s_mul_i32 s22, s16, 288
        s_add_u32 s22, s22, {64*j}
        v_add_u32 v11, s22, v1
        s_movk_i32 s23, 3641
        v_mul_lo_u32 v12, v11, s23
        v_lshrrev_b32 v12, 16, v12
        v_mul_u32_u24 v13, 18, v12
        v_sub_u32 v13, v11, v13
        v_lshrrev_b32 v14, 3, v12
        v_and_b32 v14, 1, v14
        v_lshlrev_b32 v14, 2, v14
        v_xor_b32 v12, v12, v14
        s_mov_b32 s23, {strideB}
        v_mul_lo_u32 v12, v12, s23
        v_lshlrev_b32 v14, 4, v13
        v_add_u32 v12, v12, v14
        """)
        if split is not None:
            a(f"""
            v_mov_b32 v14, {split}
            v_cmp_lt_u32 vcc, 8, v13
            v_cndmask_b32 v14, 0, v14, vcc
            v_add_u32 v12, v12, v14
            """)
        a(f"v_add_u32 v{4+j}, s18, v12")

def setup_tr(a):
    a("""
    v_lshrrev_b32 v11, 4, v1
    v_and_b32 v12, 15, v1
    v_lshrrev_b32 v13, 2, v12
    v_and_b32 v14, 3, v12
    v_and_b32 v15, 1, v11
    v_lshlrev_b32 v15, 2, v15
    v_lshlrev_b32 v11, 3, v11
    v_add_u32 v11, v11, v13
    v_add_u32 v12, v11, v15
    v_mul_u32_u24 v12, 288, v12
    v_lshlrev_b32 v14, 3, v14
    v_add_u32 v9, v12, v14
    v_xor_b32 v15, 4, v15
    v_add_u32 v12, v11, v15
    v_mul_u32_u24 v12, 288, v12
    v_add_u32 v10, v12, v14
    """)

def issue_A(a, st, setidx):
    base = VA + 16 * setidx
    if 'noA' in DBG:
        for i in range(4): a("buffer_load_dword v15, v2, s[4:7], s24 offen")
        return
    for rt in range(2):
        for ks in range(2):
            r = base + (rt * 2 + ks) * 4
            a(f"buffer_load_dwordx4 v[{r}:{r+3}], v{2+rt}, s[4:7], s24 offen offset:{ks*64}")
    a("s_add_u32 s24, s24, 128")

def issue_DMA(a, st, strideB):
    buf = st % 3
    for j in range(5):
        a(f"s_add_u32 m0, s26, {buf*BSTAGE + j*1024}")
        if j == 4:
            a("s_mov_b64 exec, 0xffffffff")
        else:
            a("s_nop 0")
        a(f"buffer_load_dwordx4 v{4+j}, s[8:11], s25 offen lds" if 'noB' not in DBG else "buffer_load_dword v15, v2, s[4:7], s24 offen")
        if j == 4:
            a("s_mov_b64 exec, -1")
    a(f"s_add_u32 s25, s25, {64*strideB}")

ASTAGE = 16384
RING = 4
LDS_A = RING * BSTAGE

def setup_A_lds(a, strideA):
    a(f"""
    v_lshrrev_b32 v11, 3, v1
    s_lshl_b32 s22, s16, 5
    s_add_u32 s22, s22, s17
    v_add_u32 v12, s22, v11
    s_mov_b32 s23, {strideA}
    v_mul_lo_u32 v2, v12, s23
    v_lshrrev_b32 v12, 1, v11
    v_and_b32 v12, 7, v12
    v_and_b32 v13, 7, v1
    v_xor_b32 v12, v12, v13
    v_lshlrev_b32 v12, 4, v12
    v_xor_b32 v13, 64, v12
    v_add_u32 v105, v2, v13
    v_add_u32 v2, v2, v12
    v_and_b32 v11, 15, v1
    v_lshrrev_b32 v12, 4, v1
    v_lshrrev_b32 v13, 1, v11
    v_and_b32 v13, 7, v13
    v_xor_b32 v14, v12, v13
    v_lshlrev_b32 v14, 4, v14
    v_xor_b32 v15, 4, v12
    v_xor_b32 v15, v15, v13
    v_lshlrev_b32 v15, 4, v15
    s_lshl_b32 s22, s16, 12
    v_lshlrev_b32 v11, 7, v11
    v_add_u32 v11, s22, v11
    v_add_u32 v11, 73728, v11
    v_add_u32 v3, v11, v14
    v_add_u32 v104, v11, v15
    """)

def issue_stage(a, buf, strideA, strideB):
    a("s_cmp_gt_i32 s28, 0")
    a("s_cselect_b32 s22, s25, s29")
    a("s_cselect_b32 s23, s24, s29")
    for j in range(4):
        a(f"s_add_u32 m0, s31, {LDS_A + buf*ASTAGE + j*1024}")
        a(f"s_add_u32 s27, s23, {j*8*strideA}")
        a(f"buffer_load_dwordx4 v{2 if j%2==0 else 105}, s[4:7], s27 offen lds")
    for j in range(5):
        a(f"s_add_u32 m0, s26, {buf*BSTAGE + j*1024}")
        if j == 4:
            a("s_mov_b64 exec, 0xffffffff")
        else:
            a("s_nop 0")
        a(f"buffer_load_dwordx4 v{4+j}, s[8:11], s22 offen lds")
        if j == 4:
            a("s_mov_b64 exec, -1")
    a(f"s_add_u32 s25, s25, {64*strideB}")
    a("s_add_u32 s24, s24, 128")
    a("s_sub_u32 s28, s28, 1")

def engine(a, nst, strideA, strideB, swap):
    for i in range(72):
        a(f"v_accvgpr_write_b32 a{i}, 0")
    a(f"""
    s_mul_i32 s26, s16, 4608
    s_lshl_b32 s31, s16, 12
    s_mov_b32 s29, 0x7ffffff0
    s_mov_b32 s28, {nst}
    s_mov_b32 s30, {nst}
    """)
    for r in range(RING - 1):
        issue_stage(a, r, strideA, strideB)
    loop = a.newlabel("Lloop")
    lend = a.newlabel("Lend")
    a.label(loop)
    for st in range(RING):
        a(f"s_waitcnt vmcnt({9*(RING-2)})")
        a("s_barrier")
        issue_stage(a, (st + RING - 1) % RING, strideA, strideB)
        buf = st
        for rt in range(2):
            for ks in range(2):
                r = VA + (rt * 2 + ks) * 4
                a(f"ds_read_b128 v[{r}:{r+3}], v{3 if ks == 0 else 104} offset:{buf*ASTAGE + rt*2048}")
        def rd(f):
            ks, t = divmod(f, 9)
            r = VB + (f % NBF) * 4
            off = buf * BSTAGE + ks * 9216 + t * 32
            a(f"ds_read_b64_tr_b16 v[{r}:{r+1}], v9 offset:{off}")
            a(f"ds_read_b64_tr_b16 v[{r+2}:{r+3}], v10 offset:{off}")
        for f in range(PF):
            rd(f)
        for f in range(18):
            if f + PF < 18:
                rd(f + PF)
            a(f"s_waitcnt lgkmcnt({2*min(PF, 17-f)})")
            ks, t = divmod(f, 9)
            r = VB + (f % NBF) * 4
            for rt in range(2):
                ar = VA + (rt * 2 + ks) * 4
                c = (rt * 9 + t) * 4
                if swap:
                    a(f"v_mfma_f32_16x16x32_bf16 a[{c}:{c+3}], v[{r}:{r+3}], v[{ar}:{ar+3}], a[{c}:{c+3}]")
                else:
                    a(f"v_mfma_f32_16x16x32_bf16 a[{c}:{c+3}], v[{ar}:{ar+3}], v[{r}:{r+3}], a[{c}:{c+3}]")
        a("s_sub_u32 s30, s30, 1")
        a("s_cmp_eq_u32 s30, 0")
        a(f"s_cbranch_scc1 {lend}" if st < RING - 1 else f"s_cbranch_scc0 {loop}")
    a.label(lend)
    a("s_waitcnt vmcnt(0)")

WS_QKV = 0x1400000
WS_KVF = 0x1C00000
WS_O2  = 0x2000000

def kstart(a, name):
    a.raw(f".globl {name}\n.p2align 8\n.type {name},@function")
    a.label(name)

def store_epi(a, relu, f32part):
    a(f"""
    s_nop 7
    s_nop 7
    v_and_b32 v11, 15, v1
    s_lshl_b32 s22, s16, 5
    s_add_u32 s22, s22, s17
    v_add_u32 v11, s22, v11
    v_mul_lo_u32 v12, v11, s33
    v_lshrrev_b32 v13, 4, v1
    v_lshlrev_b32 v13, {4 if f32part else 3}, v13
    v_add_u32 v12, v12, v13
    v_add_u32 v12, s18, v12
    v_add_u32 v12, s34, v12
    s_lshl_b32 s22, s33, 4
    v_add_u32 v13, s22, v12
    """)
    for rt in range(2):
        for t in range(9):
            c = (rt * 9 + t) * 4
            b = 16 + 8 * (t % 4)
            a(f"""
            s_nop 1
            v_accvgpr_read_b32 v{b}, a{c}
            v_accvgpr_read_b32 v{b+1}, a{c+1}
            v_accvgpr_read_b32 v{b+2}, a{c+2}
            v_accvgpr_read_b32 v{b+3}, a{c+3}
            """)
            if f32part:
                a(f"buffer_store_dwordx4 v[{b}:{b+3}], v{12+rt}, s[12:15], 0 offen offset:{t*64}")
                continue
            if relu:
                for i in range(4): a(f"v_max_f32 v{b+i}, 0, v{b+i}")
            a(f"""
            v_cvt_pk_bf16_f32 v{b+4}, v{b}, v{b+1}
            v_cvt_pk_bf16_f32 v{b+5}, v{b+2}, v{b+3}
            buffer_store_dwordx2 v[{b+4}:{b+5}], v{12+rt}, s[12:15], 0 offen offset:{t*32}
            """)

def srd(a, d, lo, size):
    a(f"s_mov_b32 s{d}, s{lo}\ns_mov_b32 s{d+1}, s{lo+1}\ns_mov_b32 s{d+2}, {size}\ns_mov_b32 s{d+3}, 0x00020000")

def gen_k1(a):
    kstart(a, "k1_kernel")
    a("""
    s_load_dwordx4 s[40:43], s[0:1], 0
    s_load_dwordx2 s[44:45], s[0:1], 32
    s_load_dwordx2 s[46:47], s[0:1], 72
    s_cmp_ge_u32 s2, 704
    s_cbranch_scc1 k1_done
    """)
    setup_lane_common(a)
    a("s_waitcnt lgkmcnt(0)")
    srd(a, 4, 40, S*D*2); srd(a, 12, 46, WS_SIZE)
    a("s_mov_b32 s24, 0\ns_mov_b32 s25, 0\ns_cmp_ge_u32 s2, 192\ns_cbranch_scc1 k1_ffn")
    srd(a, 8, 42, D*3*D*2)
    a(f"""
    s_mul_hi_u32 s17, s2, {(2**32+11)//12}
    s_mul_i32 s19, s17, 12
    s_sub_u32 s19, s2, s19
    s_lshl_b32 s17, s17, 7
    s_mul_i32 s18, s19, 288
    s_mov_b32 s33, {3*D*2}
    s_mov_b32 s34, {WS_QKV}
    """)
    setup_A_lds(a, D*2); setup_B(a, 3*D*2); setup_tr(a)
    engine(a, 9, D*2, 3*D*2, True)
    store_epi(a, False, False)
    a("s_branch k1_done")
    a.label("k1_ffn")
    srd(a, 8, 44, D*DFF*2)
    a(f"""
    s_sub_u32 s3, s2, 192
    s_and_b32 s19, s3, 31
    s_lshr_b32 s17, s3, 5
    s_lshl_b32 s17, s17, 7
    s_mul_i32 s18, s19, 288
    s_mov_b32 s33, {DFF*2}
    s_mov_b32 s34, {WS_H}
    """)
    setup_A_lds(a, D*2); setup_B(a, DFF*2); setup_tr(a)
    engine(a, 9, D*2, DFF*2, True)
    store_epi(a, True, False)
    a.label("k1_done")
    a("s_endpgm")

def phi(a, v, t1, t2):
    a(f"""
    v_add_f32 {t1}, 1.0, {v}
    v_mul_f32 {t2}, 0x3fb8aa3b, {v}
    v_exp_f32 {t2}, {t2}
    v_cmp_lt_f32 vcc, 0, {v}
    v_cndmask_b32 {v}, {t2}, {t1}, vcc
    v_cvt_pk_bf16_f32 {v}, {v}, {v}
    v_lshlrev_b32 {v}, 16, {v}
    v_add_f32 {v}, 0x358637bd, {v}
    v_cvt_pk_bf16_f32 {v}, {v}, {v}
    v_lshlrev_b32 {v}, 16, {v}
    """)

def gen_kkv(a):
    kstart(a, "kkv_kernel")
    a(f"""
    s_load_dwordx2 s[46:47], s[0:1], 72
    s_cmp_ge_u32 s2, 512
    s_cbranch_scc1 kkv_done
    s_waitcnt lgkmcnt(0)
    """)
    srd(a, 12, 46, WS_SIZE)
    a(f"""
    s_lshr_b32 s4, s2, 4
    s_and_b32 s5, s2, 15
    v_lshrrev_b32 v1, 1, v0
    v_and_b32 v2, 1, v0
    s_lshl_b32 s6, s5, 7
    v_add_u32 v3, s6, v1
    s_movk_i32 s7, {3*D*2}
    v_mul_lo_u32 v3, v3, s7
    s_mul_i32 s8, s4, 36
    s_add_u32 s8, s8, {WS_QKV + D*2}
    v_add_u32 v3, s8, v3
    v_mul_u32_u24 v4, {D*2}, v2
    v_add_u32 v3, v3, v4
    """)
    a("buffer_load_dwordx4 v[16:19], v3, s[12:15], 0 offen\nbuffer_load_dwordx4 v[20:23], v3, s[12:15], 0 offen offset:16\nbuffer_load_dword v24, v3, s[12:15], 0 offen offset:32")
    a(f"""
    v_mul_u32_u24 v5, 144, v1
    v_mul_u32_u24 v6, 72, v2
    v_add_u32 v5, v5, v6
    v_cmp_eq_u32 s[20:21], 0, v2
    s_waitcnt vmcnt(0)
    """)
    for i in range(9):
        for hi in range(2):
            a(f"v_lshlrev_b32 v30, 16, v{16+i}" if hi == 0 else f"v_and_b32 v30, 0xffff0000, v{16+i}")
            a("v_mov_b32 v31, v30")
            phi(a, "v31", "v32", "v33")
            a(f"v_cndmask_b32 v30, v30, v31, s[20:21]")
            a(f"ds_write_b32 v5, v30 offset:{(2*i+hi)*4}")
    a("s_waitcnt lgkmcnt(0)\ns_barrier")
    for rep in range(2):
        a(f"""
        v_add_u32 v7, {256*rep}, v0
        s_movk_i32 s7, 3641
        v_mul_lo_u32 v8, v7, s7
        v_lshrrev_b32 v8, 16, v8
        v_mul_u32_u24 v9, 18, v8
        v_sub_u32 v9, v7, v9
        v_cmp_gt_u32 vcc, 324, v7
        v_cndmask_b32 v8, v9, v8, vcc
        v_lshlrev_b32 v8, 2, v8
        v_lshlrev_b32 v9, 2, v9
        v_add_u32 v9, 72, v9
        v_mov_b32 v10, 0
        s_mov_b32 s10, 0
        """)
        L = a.newlabel("kvL")
        a.label(L)
        for u in range(8):
            a(f"ds_read_b32 v{40+u}, v8 offset:{144*u}\nds_read_b32 v{48+u}, v9 offset:{144*u}")
        a("v_add_u32 v8, 1152, v8\nv_add_u32 v9, 1152, v9\ns_waitcnt lgkmcnt(0)")
        for u in range(8):
            a(f"v_cndmask_b32 v{48+u}, 1.0, v{48+u}, vcc\nv_fmac_f32 v10, v{40+u}, v{48+u}")
        a(f"""
        s_add_u32 s10, s10, 8
        s_cmp_lt_u32 s10, 128
        s_cbranch_scc1 {L}
        s_mul_i32 s11, s2, 1368
        s_add_u32 s11, s11, {WS_KVP}
        v_lshlrev_b32 v13, 2, v7
        v_add_u32 v13, s11, v13
        v_cmp_gt_u32 vcc, 342, v7
        s_and_saveexec_b64 s[24:25], vcc
        buffer_store_dword v10, v13, s[12:15], 0 offen
        s_mov_b64 exec, s[24:25]
        """)
    a.label("kkv_done")
    a("s_endpgm")

def gen_kred(a):
    kstart(a, "kred_kernel")
    a(f"""
    s_load_dwordx2 s[46:47], s[0:1], 72
    s_cmp_ge_u32 s2, 32
    s_cbranch_scc1 kred_done
    s_waitcnt lgkmcnt(0)
    """)
    srd(a, 12, 46, WS_SIZE)
    for rep in range(2):
        a(f"""
        v_add_u32 v7, {256*rep}, v0
        s_mul_i32 s11, s2, {16*1368}
        s_add_u32 s11, s11, {WS_KVP}
        v_lshlrev_b32 v13, 2, v7
        v_add_u32 v13, s11, v13
        """)
        for i in range(16):
            a(f"s_movk_i32 s9, {1368*i}\nbuffer_load_dword v{16+i}, v13, s[12:15], s9 offen")
        a("s_waitcnt vmcnt(0)")
        for i in range(1, 16):
            a(f"v_add_f32 v16, v16, v{16+i}")
        a(f"""
        v_cvt_pk_bf16_f32 v16, v16, v16
        v_lshlrev_b32 v16, 16, v16
        s_mul_i32 s11, s2, 1368
        s_add_u32 s11, s11, {WS_KVF}
        v_lshlrev_b32 v13, 2, v7
        v_add_u32 v13, s11, v13
        v_cmp_gt_u32 vcc, 342, v7
        s_and_saveexec_b64 s[24:25], vcc
        buffer_store_dword v16, v13, s[12:15], 0 offen
        s_mov_b64 exec, s[24:25]
        """)
    a.label("kred_done")
    a("s_endpgm")

def bfr(a, v):
    a(f"v_cvt_pk_bf16_f32 {v}, {v}, {v}\nv_lshlrev_b32 {v}, 16, {v}")

def gen_ko(a):
    kstart(a, "ko_kernel")
    a(f"""
    s_load_dwordx2 s[46:47], s[0:1], 72
    s_cmp_ge_u32 s2, 256
    s_cbranch_scc1 ko_done
    v_lshrrev_b32 v2, 6, v0
    v_and_b32 v1, 63, v0
    s_nop 0
    v_readfirstlane_b32 s16, v2
    s_and_b32 s4, s2, 7
    s_lshl_b32 s4, s4, 2
    s_add_u32 s4, s4, s16
    s_lshr_b32 s5, s2, 3
    s_lshl_b32 s5, s5, 6
    s_waitcnt lgkmcnt(0)
    """)
    srd(a, 12, 46, WS_SIZE)
    a(f"""
    v_add_u32 v3, s5, v1
    s_movk_i32 s7, {3*D*2}
    v_mul_lo_u32 v3, v3, s7
    s_mul_i32 s8, s4, 36
    s_add_u32 s8, s8, {WS_QKV}
    v_add_u32 v3, s8, v3
    """)
    a("buffer_load_dwordx4 v[16:19], v3, s[12:15], 0 offen\nbuffer_load_dwordx4 v[20:23], v3, s[12:15], 0 offen offset:16\nbuffer_load_dword v24, v3, s[12:15], 0 offen offset:32")
    a(f"""
    s_mul_i32 s6, s4, {16*1368}
    s_add_u32 s6, s6, {WS_KVP}
    v_lshlrev_b32 v4, 2, v1
    v_add_u32 v5, s6, v4
    s_mul_i32 s9, s16, 1536
    v_add_u32 v6, s9, v4
    """)
    for c in range(16):
        a(f"s_movk_i32 s9, {1368*c}")
        for i in range(6):
            a(f"buffer_load_dword v{64+6*c+i}, v5, s[12:15], s9 offen offset:{256*i}")
    a("s_waitcnt vmcnt(0)")
    for i in range(6):
        for c in range(1, 16):
            a(f"v_add_f32 v{64+i}, v{64+i}, v{64+6*c+i}")
        bfr(a, f"v{64+i}")
        a(f"ds_write_b32 v6, v{64+i} offset:{256*i}")
    for i in range(9):
        a(f"v_lshlrev_b32 v{32+2*i}, 16, v{16+i}\nv_and_b32 v{33+2*i}, 0xffff0000, v{16+i}")
    for d in range(18):
        phi(a, f"v{32+d}", "v60", "v61")
    a("s_mul_i32 s9, s16, 1536\nv_mov_b32 v7, s9\ns_waitcnt lgkmcnt(0)")
    for j in range(4):
        a(f"ds_read_b128 v[{96+4*j}:{99+4*j}], v7 offset:{1296+16*j}")
    a("ds_read_b64 v[112:113], v7 offset:1360\nv_mov_b32 v62, 0\ns_waitcnt lgkmcnt(0)")
    for d in range(18):
        a(f"v_fmac_f32 v62, v{96+d}, v{32+d}")
    bfr(a, "v62")
    a("v_add_f32 v62, 0x358637bd, v62")
    bfr(a, "v62")
    a("v_rcp_f32 v63, v62")
    for e in range(18):
        a(f"v_mov_b32 v{64+e}, 0")
    for d in range(18):
        b = 96 + 20 * (d % 2)
        for j in range(4):
            a(f"ds_read_b128 v[{b+4*j}:{b+3+4*j}], v7 offset:{72*d+16*j}")
        a(f"ds_read_b64 v[{b+16}:{b+17}], v7 offset:{72*d+64}")
        if d > 0:
            pb = 96 + 20 * ((d - 1) % 2)
            a("s_waitcnt lgkmcnt(5)")
            for e in range(18):
                a(f"v_fmac_f32 v{64+e}, v{pb+e}, v{32+d-1}")
    a("s_waitcnt lgkmcnt(0)")
    for e in range(18):
        a(f"v_fmac_f32 v{64+e}, v{96+20+e}, v{32+17}")
    for e in range(18):
        bfr(a, f"v{64+e}")
        a(f"v_mul_f32 v{64+e}, v{64+e}, v63")
    a(f"""
    v_add_u32 v3, s5, v1
    s_movk_i32 s7, {D*2}
    v_mul_lo_u32 v3, v3, s7
    s_mul_i32 s8, s4, 36
    s_add_u32 s8, s8, {WS_O2}
    v_add_u32 v3, s8, v3
    """)
    for i in range(9):
        a(f"v_cvt_pk_bf16_f32 v{16+i}, v{64+2*i}, v{65+2*i}")
    a("buffer_store_dwordx4 v[16:19], v3, s[12:15], 0 offen\nbuffer_store_dwordx4 v[20:23], v3, s[12:15], 0 offen offset:16\nbuffer_store_dword v24, v3, s[12:15], 0 offen offset:32")
    a.label("ko_done")
    a("s_endpgm")

def gen_k2(a):
    kstart(a, "k2_kernel")
    a("""
    s_load_dwordx2 s[40:41], s[0:1], 16
    s_load_dwordx2 s[44:45], s[0:1], 40
    s_load_dwordx2 s[46:47], s[0:1], 72
    s_cmp_ge_u32 s2, 256
    s_cbranch_scc1 k2_done
    """)
    setup_lane_common(a)
    a("s_waitcnt lgkmcnt(0)")
    srd(a, 4, 46, WS_SIZE); srd(a, 12, 46, WS_SIZE)
    a(f"""
    s_lshr_b32 s3, s2, 2
    s_and_b32 s19, s3, 3
    s_lshr_b32 s17, s3, 2
    s_lshl_b32 s17, s17, 7
    s_mul_i32 s18, s19, 288
    s_and_b32 s35, s2, 3
    s_mov_b32 s33, {D*4}
    s_mul_i32 s34, s35, {S*D*4}
    s_add_u32 s34, s34, {WS_PART}
    s_cmp_eq_u32 s35, 3
    s_cbranch_scc1 k2_att
    """)
    srd(a, 8, 44, D*DFF*2)
    a(f"s_mul_i32 s24, s35, 3072\ns_mul_i32 s25, s35, {1536*D*2}")
    setup_A_lds(a, DFF*2); setup_B(a, D*2); setup_tr(a)
    engine(a, 24, DFF*2, D*2, True)
    a("s_lshl_b32 s18, s18, 1")
    store_epi(a, False, True)
    a("s_branch k2_done")
    a.label("k2_att")
    srd(a, 8, 40, D*D*2)
    a(f"s_mov_b32 s24, {WS_O2}\ns_mov_b32 s25, 0")
    setup_A_lds(a, D*2); setup_B(a, D*2); setup_tr(a)
    engine(a, 9, D*2, D*2, True)
    a("s_lshl_b32 s18, s18, 1")
    store_epi(a, False, True)
    a.label("k2_done")
    a("s_endpgm")

def gen_kfin(a):
    kstart(a, "kfin_kernel")
    a("""
    s_load_dwordx2 s[40:41], s[0:1], 0
    s_load_dwordx2 s[42:43], s[0:1], 48
    s_load_dwordx2 s[44:45], s[0:1], 56
    s_load_dwordx2 s[46:47], s[0:1], 72
    s_cmp_ge_u32 s2, 512
    s_cbranch_scc1 kfin_done
    v_lshrrev_b32 v2, 6, v0
    v_and_b32 v1, 63, v0
    s_nop 0
    v_readfirstlane_b32 s16, v2
    s_lshl_b32 s4, s2, 2
    s_add_u32 s4, s4, s16
    s_waitcnt lgkmcnt(0)
    """)
    srd(a, 4+4, 40, S*D*2); srd(a, 20, 42, D*2); srd(a, 24, 44, S*D*2); srd(a, 12, 46, WS_SIZE)
    a(f"""
    v_lshlrev_b32 v3, 1, v1
    s_mul_i32 s5, s4, {D*2}
    s_mul_i32 s6, s4, {D*4}
    s_add_u32 s6, s6, {WS_PART}
    v_lshlrev_b32 v4, 2, v1
    v_mov_b32 v5, 0
    """)
    for i in range(9):
        a(f"buffer_load_ushort v{16+i}, v3, s[8:11], s5 offen offset:{128*i}\nbuffer_load_ushort v{32+i}, v3, s[20:23], 0 offen offset:{128*i}")
    a("s_waitcnt vmcnt(0)")
    for i in range(9):
        a(f"v_lshlrev_b32 v{16+i}, 16, v{16+i}\nv_lshlrev_b32 v{32+i}, 16, v{32+i}\nv_mul_f32 v{16+i}, v{16+i}, v{32+i}")
        bfr(a, f"v{16+i}")
        a(f"v_add_f32 v5, v5, v{16+i}")
    for off in (1, 2, 4, 8, 16, 32):
        a(f"v_xor_b32 v6, {off*4}, v4\nds_bpermute_b32 v7, v6, v5\ns_waitcnt lgkmcnt(0)\nv_add_f32 v5, v5, v7")
    bfr(a, "v5")
    a("v_mul_f32 v5, 0xbfb8aa3b, v5\nv_exp_f32 v5, v5\ns_nop 0\nv_add_f32 v5, 1.0, v5\nv_rcp_f32 v5, v5\ns_nop 0")
    bfr(a, "v5")
    a("v_sub_f32 v6, 1.0, v5")
    bfr(a, "v6")
    for i in range(9):
        for q in range(4):
            a(f"s_add_u32 s7, s6, {q*S*D*4}\nbuffer_load_dword v{16+4*i+q}, v4, s[12:15], s7 offen offset:{256*i}")
    a("s_waitcnt vmcnt(0)")
    for i in range(9):
        b = 16 + 4 * i
        a(f"v_add_f32 v{b}, v{b}, v{b+1}\nv_add_f32 v{b}, v{b}, v{b+2}")
        bfr(a, f"v{b}"); bfr(a, f"v{b+3}")
        a(f"v_mul_f32 v{b}, v{b}, v6\nv_mul_f32 v{b+3}, v{b+3}, v5")
        bfr(a, f"v{b}"); bfr(a, f"v{b+3}")
        a(f"v_add_f32 v{b}, v{b}, v{b+3}\nv_cvt_pk_bf16_f32 v{b}, v{b}, v{b}\nbuffer_store_short v{b}, v3, s[24:27], s5 offen offset:{128*i}")
    a.label("kfin_done")
    a("s_endpgm")

def descriptor(name, vgpr, accum):
    return f""".amdhsa_kernel {name}
  .amdhsa_next_free_vgpr {vgpr}
  .amdhsa_next_free_sgpr 96
  .amdhsa_accum_offset {accum}
  .amdhsa_group_segment_fixed_size 0
  .amdhsa_kernarg_size 80
  .amdhsa_user_sgpr_count 2
  .amdhsa_user_sgpr_kernarg_segment_ptr 1
  .amdhsa_system_sgpr_workgroup_id_x 1
.end_amdhsa_kernel
"""

def main():
    a = Asm()
    hdr = """; generated by gen/gen.py
; @launch kernel=k1_kernel grid=(704,1,1) block=(256,1,1) lds=139264
; @launch kernel=kkv_kernel grid=(512,1,1) block=(256,1,1) lds=18432
; @launch kernel=ko_kernel grid=(256,1,1) block=(256,1,1) lds=6144
; @launch kernel=k2_kernel grid=(256,1,1) block=(256,1,1) lds=139264
; @launch kernel=kfin_kernel grid=(512,1,1) block=(256,1,1) lds=0
.amdgcn_target "amdgcn-amd-amdhsa--gfx950"
.text
"""
    gen_k1(a); gen_kkv(a); gen_ko(a); gen_k2(a); gen_kfin(a)
    out = hdr + a.text() + '.section .rodata,"a"\n'
    for k in ("k1", "k2"):
        out += ".p2align 6\n" + descriptor(k + "_kernel", 184, 112)
    for k in ("kkv", "ko", "kfin"):
        out += ".p2align 6\n" + descriptor(k + "_kernel", 168, 168)
    open(sys.argv[1] if len(sys.argv) > 1 else f"cdna_kernels/{NAME}.s", "w").write(out)

main()
```

```python
import sys, os
from emit import Asm
DBG = os.environ.get('GDBG','')

NAME = "gated_mix__linear_attn_block__dense_activation_relu__prompt"
S, D, DFF, H, DH = 2048, 576, 4608, 32, 18
WS_H    = 0x0000000
WS_PQ   = 0x1400000
WS_G    = 0x1800000
WS_KVP  = 0x1B40000
WS_KVZ  = 0x1C00000
WS_O    = 0x2000000
WS_PART = 0x3000000
WS_SIZE = 0x10000000

BSTAGE = 18432
PF = 4
NBF = 6
VB = 80
VA = 16

def setup_lane_common(a):
    a("""
    v_and_b32 v1, 63, v0
    v_lshrrev_b32 v11, 6, v0
    s_nop 0
    v_readfirstlane_b32 s16, v11
    """)

def setup_A(a, strideA):
    a(f"""
    v_and_b32 v11, 15, v1
    s_lshl_b32 s22, s16, 5
    s_add_u32 s22, s22, s17
    v_add_u32 v11, s22, v11
    s_mov_b32 s23, {strideA}
    v_mul_lo_u32 v2, v11, s23
    v_lshrrev_b32 v12, 4, v1
    v_lshlrev_b32 v12, 4, v12
    v_add_u32 v2, v2, v12
    v_add_u32 v3, {16*strideA}, v2
    """)

def setup_B(a, strideB, split=None):
    for j in range(5):
        a(f"""
        s_mul_i32 s22, s16, 288
        s_add_u32 s22, s22, {64*j}
        v_add_u32 v11, s22, v1
        s_movk_i32 s23, 3641
        v_mul_lo_u32 v12, v11, s23
        v_lshrrev_b32 v12, 16, v12
        v_mul_u32_u24 v13, 18, v12
        v_sub_u32 v13, v11, v13
        v_lshrrev_b32 v14, 3, v12
        v_and_b32 v14, 1, v14
        v_lshlrev_b32 v14, 2, v14
        v_xor_b32 v12, v12, v14
        s_mov_b32 s23, {strideB}
        v_mul_lo_u32 v12, v12, s23
        v_lshlrev_b32 v14, 4, v13
        v_add_u32 v12, v12, v14
        """)
        if split is not None:
            a(f"""
            v_mov_b32 v14, {split}
            v_cmp_lt_u32 vcc, 8, v13
            v_cndmask_b32 v14, 0, v14, vcc
            v_add_u32 v12, v12, v14
            """)
        a(f"v_add_u32 v{4+j}, s18, v12")

def setup_tr(a):
    a("""
    v_lshrrev_b32 v11, 4, v1
    v_and_b32 v12, 15, v1
    v_lshrrev_b32 v13, 2, v12
    v_and_b32 v14, 3, v12
    v_and_b32 v15, 1, v11
    v_lshlrev_b32 v15, 2, v15
    v_lshlrev_b32 v11, 3, v11
    v_add_u32 v11, v11, v13
    v_add_u32 v12, v11, v15
    v_mul_u32_u24 v12, 288, v12
    v_lshlrev_b32 v14, 3, v14
    v_add_u32 v9, v12, v14
    v_xor_b32 v15, 4, v15
    v_add_u32 v12, v11, v15
    v_mul_u32_u24 v12, 288, v12
    v_add_u32 v10, v12, v14
    """)

def issue_A(a, st, setidx):
    base = VA + 16 * setidx
    if 'noA' in DBG:
        for i in range(4): a("buffer_load_dword v15, v2, s[4:7], s24 offen")
        return
    for rt in range(2):
        for ks in range(2):
            r = base + (rt * 2 + ks) * 4
            a(f"buffer_load_dwordx4 v[{r}:{r+3}], v{2+rt}, s[4:7], s24 offen offset:{ks*64}")
    a("s_add_u32 s24, s24, 128")

def issue_DMA(a, st, strideB):
    buf = st % 3
    for j in range(5):
        a(f"s_add_u32 m0, s26, {buf*BSTAGE + j*1024}")
        if j == 4:
            a("s_mov_b64 exec, 0xffffffff")
        else:
            a("s_nop 0")
        a(f"buffer_load_dwordx4 v{4+j}, s[8:11], s25 offen lds" if 'noB' not in DBG else "buffer_load_dword v15, v2, s[4:7], s24 offen")
        if j == 4:
            a("s_mov_b64 exec, -1")
    a(f"s_add_u32 s25, s25, {64*strideB}")

ASTAGE = 16384
RING = 2
LDS_A = RING * BSTAGE

def setup_A_lds(a, strideA):
    a(f"""
    v_lshrrev_b32 v11, 3, v1
    s_lshl_b32 s22, s16, 5
    s_add_u32 s22, s22, s17
    v_add_u32 v12, s22, v11
    s_mov_b32 s23, {strideA}
    v_mul_lo_u32 v2, v12, s23
    v_lshrrev_b32 v12, 1, v11
    v_and_b32 v12, 7, v12
    v_and_b32 v13, 7, v1
    v_xor_b32 v12, v12, v13
    v_lshlrev_b32 v12, 4, v12
    v_xor_b32 v13, 64, v12
    v_add_u32 v105, v2, v13
    v_add_u32 v2, v2, v12
    v_and_b32 v11, 15, v1
    v_lshrrev_b32 v12, 4, v1
    v_lshrrev_b32 v13, 1, v11
    v_and_b32 v13, 7, v13
    v_xor_b32 v14, v12, v13
    v_lshlrev_b32 v14, 4, v14
    v_xor_b32 v15, 4, v12
    v_xor_b32 v15, v15, v13
    v_lshlrev_b32 v15, 4, v15
    s_lshl_b32 s22, s16, 12
    v_lshlrev_b32 v11, 7, v11
    v_add_u32 v11, s22, v11
    v_add_u32 v11, 36864, v11
    v_add_u32 v3, v11, v14
    v_add_u32 v104, v11, v15
    """)

def issue_stage(a, buf, strideA, strideB):
    a("s_cmp_gt_i32 s28, 0")
    a("s_cselect_b32 s22, s25, s29")
    a("s_cselect_b32 s23, s24, s29")
    for j in range(4):
        a(f"s_add_u32 m0, s31, {LDS_A + buf*ASTAGE + j*1024}")
        a(f"s_add_u32 s27, s23, {j*8*strideA}")
        a(f"buffer_load_dwordx4 v{2 if j%2==0 else 105}, s[4:7], s27 offen lds")
    for j in range(5):
        a(f"s_add_u32 m0, s26, {buf*BSTAGE + j*1024}")
        if j == 4:
            a("s_mov_b64 exec, 0xffffffff")
        else:
            a("s_nop 0")
        a(f"buffer_load_dwordx4 v{4+j}, s[8:11], s22 offen lds")
        if j == 4:
            a("s_mov_b64 exec, -1")
    a(f"s_add_u32 s25, s25, {64*strideB}")
    a("s_add_u32 s24, s24, 128")
    a("s_sub_u32 s28, s28, 1")

def engine(a, nst, strideA, strideB, swap):
    for i in range(72):
        a(f"v_accvgpr_write_b32 a{i}, 0")
    a(f"""
    s_mul_i32 s26, s16, 4608
    s_lshl_b32 s31, s16, 12
    s_mov_b32 s29, 0x7ffffff0
    s_mov_b32 s28, {nst}
    s_mov_b32 s30, {nst}
    """)
    for r in range(RING - 1):
        issue_stage(a, r, strideA, strideB)
    loop = a.newlabel("Lloop")
    lend = a.newlabel("Lend")
    a.label(loop)
    for st in range(RING):
        a(f"s_waitcnt vmcnt({9*(RING-2)})")
        a("s_barrier")
        issue_stage(a, (st + RING - 1) % RING, strideA, strideB)
        buf = st
        for rt in range(2):
            for ks in range(2):
                r = VA + (rt * 2 + ks) * 4
                a(f"ds_read_b128 v[{r}:{r+3}], v{3 if ks == 0 else 104} offset:{buf*ASTAGE + rt*2048}")
        def rd(f):
            ks, t = divmod(f, 9)
            r = VB + (f % NBF) * 4
            off = buf * BSTAGE + ks * 9216 + t * 32
            a(f"ds_read_b64_tr_b16 v[{r}:{r+1}], v9 offset:{off}")
            a(f"ds_read_b64_tr_b16 v[{r+2}:{r+3}], v10 offset:{off}")
        for f in range(PF):
            rd(f)
        for f in range(18):
            if f + PF < 18:
                rd(f + PF)
            a(f"s_waitcnt lgkmcnt({2*min(PF, 17-f)})")
            ks, t = divmod(f, 9)
            r = VB + (f % NBF) * 4
            for rt in range(2):
                ar = VA + (rt * 2 + ks) * 4
                c = (rt * 9 + t) * 4
                if swap:
                    a(f"v_mfma_f32_16x16x32_bf16 a[{c}:{c+3}], v[{r}:{r+3}], v[{ar}:{ar+3}], a[{c}:{c+3}]")
                else:
                    a(f"v_mfma_f32_16x16x32_bf16 a[{c}:{c+3}], v[{ar}:{ar+3}], v[{r}:{r+3}], a[{c}:{c+3}]")
        a("s_sub_u32 s30, s30, 1")
        a("s_cmp_eq_u32 s30, 0")
        a(f"s_cbranch_scc1 {lend}" if st < RING - 1 else f"s_cbranch_scc0 {loop}")
    a.label(lend)
    a("s_waitcnt vmcnt(0)")

WS_QKV = 0x1400000
WS_KVF = 0x1C00000
WS_O2  = 0x2000000

def kstart(a, name):
    a.raw(f".globl {name}\n.p2align 8\n.type {name},@function")
    a.label(name)

def store_epi(a, relu, f32part):
    a(f"""
    s_nop 7
    s_nop 7
    v_and_b32 v11, 15, v1
    s_lshl_b32 s22, s16, 5
    s_add_u32 s22, s22, s17
    v_add_u32 v11, s22, v11
    v_mul_lo_u32 v12, v11, s33
    v_lshrrev_b32 v13, 4, v1
    v_lshlrev_b32 v13, {4 if f32part else 3}, v13
    v_add_u32 v12, v12, v13
    v_add_u32 v12, s18, v12
    v_add_u32 v12, s34, v12
    s_lshl_b32 s22, s33, 4
    v_add_u32 v13, s22, v12
    """)
    for rt in range(2):
        for t in range(9):
            c = (rt * 9 + t) * 4
            b = 16 + 8 * (t % 4)
            a(f"""
            s_nop 1
            v_accvgpr_read_b32 v{b}, a{c}
            v_accvgpr_read_b32 v{b+1}, a{c+1}
            v_accvgpr_read_b32 v{b+2}, a{c+2}
            v_accvgpr_read_b32 v{b+3}, a{c+3}
            """)
            if f32part:
                a(f"buffer_store_dwordx4 v[{b}:{b+3}], v{12+rt}, s[12:15], 0 offen offset:{t*64}")
                continue
            if relu:
                for i in range(4): a(f"v_max_f32 v{b+i}, 0, v{b+i}")
            a(f"""
            v_cvt_pk_bf16_f32 v{b+4}, v{b}, v{b+1}
            v_cvt_pk_bf16_f32 v{b+5}, v{b+2}, v{b+3}
            buffer_store_dwordx2 v[{b+4}:{b+5}], v{12+rt}, s[12:15], 0 offen offset:{t*32}
            """)

def srd(a, d, lo, size):
    a(f"s_mov_b32 s{d}, s{lo}\ns_mov_b32 s{d+1}, s{lo+1}\ns_mov_b32 s{d+2}, {size}\ns_mov_b32 s{d+3}, 0x00020000")

def gen_k1(a):
    kstart(a, "k1_kernel")
    a("""
    s_load_dwordx4 s[40:43], s[0:1], 0
    s_load_dwordx2 s[44:45], s[0:1], 32
    s_load_dwordx2 s[46:47], s[0:1], 72
    s_cmp_ge_u32 s2, 704
    s_cbranch_scc1 k1_done
    """)
    setup_lane_common(a)
    a("s_waitcnt lgkmcnt(0)")
    srd(a, 4, 40, S*D*2); srd(a, 12, 46, WS_SIZE)
    a("s_mov_b32 s24, 0\ns_mov_b32 s25, 0\ns_cmp_ge_u32 s2, 192\ns_cbranch_scc1 k1_ffn")
    srd(a, 8, 42, D*3*D*2)
    a(f"""
    s_mul_hi_u32 s17, s2, {(2**32+11)//12}
    s_mul_i32 s19, s17, 12
    s_sub_u32 s19, s2, s19
    s_lshl_b32 s17, s17, 7
    s_mul_i32 s18, s19, 288
    s_mov_b32 s33, {3*D*2}
    s_mov_b32 s34, {WS_QKV}
    """)
    setup_A_lds(a, D*2); setup_B(a, 3*D*2); setup_tr(a)
    engine(a, 9, D*2, 3*D*2, True)
    store_epi(a, False, False)
    a("s_branch k1_done")
    a.label("k1_ffn")
    srd(a, 8, 44, D*DFF*2)
    a(f"""
    s_sub_u32 s3, s2, 192
    s_and_b32 s19, s3, 31
    s_lshr_b32 s17, s3, 5
    s_lshl_b32 s17, s17, 7
    s_mul_i32 s18, s19, 288
    s_mov_b32 s33, {DFF*2}
    s_mov_b32 s34, {WS_H}
    """)
    setup_A_lds(a, D*2); setup_B(a, DFF*2); setup_tr(a)
    engine(a, 9, D*2, DFF*2, True)
    store_epi(a, True, False)
    a.label("k1_done")
    a("s_endpgm")

def phi(a, v, t1, t2):
    a(f"""
    v_add_f32 {t1}, 1.0, {v}
    v_mul_f32 {t2}, 0x3fb8aa3b, {v}
    v_exp_f32 {t2}, {t2}
    v_cmp_lt_f32 vcc, 0, {v}
    v_cndmask_b32 {v}, {t2}, {t1}, vcc
    v_cvt_pk_bf16_f32 {v}, {v}, {v}
    v_lshlrev_b32 {v}, 16, {v}
    v_add_f32 {v}, 0x358637bd, {v}
    v_cvt_pk_bf16_f32 {v}, {v}, {v}
    v_lshlrev_b32 {v}, 16, {v}
    """)

def gen_kkv(a):
    kstart(a, "kkv_kernel")
    a(f"""
    s_load_dwordx2 s[46:47], s[0:1], 72
    s_cmp_ge_u32 s2, 512
    s_cbranch_scc1 kkv_done
    s_waitcnt lgkmcnt(0)
    """)
    srd(a, 12, 46, WS_SIZE)
    a(f"""
    s_lshr_b32 s4, s2, 4
    s_and_b32 s5, s2, 15
    v_lshrrev_b32 v1, 1, v0
    v_and_b32 v2, 1, v0
    s_lshl_b32 s6, s5, 7
    v_add_u32 v3, s6, v1
    s_movk_i32 s7, {3*D*2}
    v_mul_lo_u32 v3, v3, s7
    s_mul_i32 s8, s4, 36
    s_add_u32 s8, s8, {WS_QKV + D*2}
    v_add_u32 v3, s8, v3
    v_mul_u32_u24 v4, {D*2}, v2
    v_add_u32 v3, v3, v4
    """)
    a("buffer_load_dwordx4 v[16:19], v3, s[12:15], 0 offen\nbuffer_load_dwordx4 v[20:23], v3, s[12:15], 0 offen offset:16\nbuffer_load_dword v24, v3, s[12:15], 0 offen offset:32")
    a(f"""
    v_mul_u32_u24 v5, 144, v1
    v_mul_u32_u24 v6, 72, v2
    v_add_u32 v5, v5, v6
    v_cmp_eq_u32 s[20:21], 0, v2
    s_waitcnt vmcnt(0)
    """)
    for i in range(9):
        for hi in range(2):
            a(f"v_lshlrev_b32 v30, 16, v{16+i}" if hi == 0 else f"v_and_b32 v30, 0xffff0000, v{16+i}")
            a("v_mov_b32 v31, v30")
            phi(a, "v31", "v32", "v33")
            a(f"v_cndmask_b32 v30, v30, v31, s[20:21]")
            a(f"ds_write_b32 v5, v30 offset:{(2*i+hi)*4}")
    a("s_waitcnt lgkmcnt(0)\ns_barrier")
    for rep in range(2):
        a(f"""
        v_add_u32 v7, {256*rep}, v0
        s_movk_i32 s7, 3641
        v_mul_lo_u32 v8, v7, s7
        v_lshrrev_b32 v8, 16, v8
        v_mul_u32_u24 v9, 18, v8
        v_sub_u32 v9, v7, v9
        v_cmp_gt_u32 vcc, 324, v7
        v_cndmask_b32 v8, v9, v8, vcc
        v_lshlrev_b32 v8, 2, v8
        v_lshlrev_b32 v9, 2, v9
        v_add_u32 v9, 72, v9
        v_mov_b32 v10, 0
        s_mov_b32 s10, 0
        """)
        L = a.newlabel("kvL")
        a.label(L)
        for u in range(8):
            a(f"ds_read_b32 v{40+u}, v8 offset:{144*u}\nds_read_b32 v{48+u}, v9 offset:{144*u}")
        a("v_add_u32 v8, 1152, v8\nv_add_u32 v9, 1152, v9\ns_waitcnt lgkmcnt(0)")
        for u in range(8):
            a(f"v_cndmask_b32 v{48+u}, 1.0, v{48+u}, vcc\nv_fmac_f32 v10, v{40+u}, v{48+u}")
        a(f"""
        s_add_u32 s10, s10, 8
        s_cmp_lt_u32 s10, 128
        s_cbranch_scc1 {L}
        s_mul_i32 s11, s2, 1368
        s_add_u32 s11, s11, {WS_KVP}
        v_lshlrev_b32 v13, 2, v7
        v_add_u32 v13, s11, v13
        v_cmp_gt_u32 vcc, 342, v7
        s_and_saveexec_b64 s[24:25], vcc
        buffer_store_dword v10, v13, s[12:15], 0 offen
        s_mov_b64 exec, s[24:25]
        """)
    a.label("kkv_done")
    a("s_endpgm")

def gen_kred(a):
    kstart(a, "kred_kernel")
    a(f"""
    s_load_dwordx2 s[46:47], s[0:1], 72
    s_cmp_ge_u32 s2, 32
    s_cbranch_scc1 kred_done
    s_waitcnt lgkmcnt(0)
    """)
    srd(a, 12, 46, WS_SIZE)
    for rep in range(2):
        a(f"""
        v_add_u32 v7, {256*rep}, v0
        s_mul_i32 s11, s2, {16*1368}
        s_add_u32 s11, s11, {WS_KVP}
        v_lshlrev_b32 v13, 2, v7
        v_add_u32 v13, s11, v13
        """)
        for i in range(16):
            a(f"s_movk_i32 s9, {1368*i}\nbuffer_load_dword v{16+i}, v13, s[12:15], s9 offen")
        a("s_waitcnt vmcnt(0)")
        for i in range(1, 16):
            a(f"v_add_f32 v16, v16, v{16+i}")
        a(f"""
        v_cvt_pk_bf16_f32 v16, v16, v16
        v_lshlrev_b32 v16, 16, v16
        s_mul_i32 s11, s2, 1368
        s_add_u32 s11, s11, {WS_KVF}
        v_lshlrev_b32 v13, 2, v7
        v_add_u32 v13, s11, v13
        v_cmp_gt_u32 vcc, 342, v7
        s_and_saveexec_b64 s[24:25], vcc
        buffer_store_dword v16, v13, s[12:15], 0 offen
        s_mov_b64 exec, s[24:25]
        """)
    a.label("kred_done")
    a("s_endpgm")

def bfr(a, v):
    a(f"v_cvt_pk_bf16_f32 {v}, {v}, {v}\nv_lshlrev_b32 {v}, 16, {v}")

def gen_ko(a):
    kstart(a, "ko_kernel")
    a(f"""
    s_load_dwordx2 s[46:47], s[0:1], 72
    s_cmp_ge_u32 s2, 256
    s_cbranch_scc1 ko_done
    v_lshrrev_b32 v2, 6, v0
    v_and_b32 v1, 63, v0
    s_nop 0
    v_readfirstlane_b32 s16, v2
    s_and_b32 s4, s2, 7
    s_lshl_b32 s4, s4, 2
    s_add_u32 s4, s4, s16
    s_lshr_b32 s5, s2, 3
    s_lshl_b32 s5, s5, 6
    s_waitcnt lgkmcnt(0)
    """)
    srd(a, 12, 46, WS_SIZE)
    a(f"""
    v_add_u32 v3, s5, v1
    s_movk_i32 s7, {3*D*2}
    v_mul_lo_u32 v3, v3, s7
    s_mul_i32 s8, s4, 36
    s_add_u32 s8, s8, {WS_QKV}
    v_add_u32 v3, s8, v3
    """)
    a("buffer_load_dwordx4 v[16:19], v3, s[12:15], 0 offen\nbuffer_load_dwordx4 v[20:23], v3, s[12:15], 0 offen offset:16\nbuffer_load_dword v24, v3, s[12:15], 0 offen offset:32")
    a(f"""
    s_mul_i32 s6, s4, {16*1368}
    s_add_u32 s6, s6, {WS_KVP}
    v_lshlrev_b32 v4, 2, v1
    v_add_u32 v5, s6, v4
    s_mul_i32 s9, s16, 1536
    v_add_u32 v6, s9, v4
    """)
    for c in range(16):
        a(f"s_movk_i32 s9, {1368*c}")
        for i in range(6):
            a(f"buffer_load_dword v{64+6*c+i}, v5, s[12:15], s9 offen offset:{256*i}")
    a("s_waitcnt vmcnt(0)")
    for i in range(6):
        for c in range(1, 16):
            a(f"v_add_f32 v{64+i}, v{64+i}, v{64+6*c+i}")
        bfr(a, f"v{64+i}")
        a(f"ds_write_b32 v6, v{64+i} offset:{256*i}")
    for i in range(9):
        a(f"v_lshlrev_b32 v{32+2*i}, 16, v{16+i}\nv_and_b32 v{33+2*i}, 0xffff0000, v{16+i}")
    for d in range(18):
        phi(a, f"v{32+d}", "v60", "v61")
    a("s_mul_i32 s9, s16, 1536\nv_mov_b32 v7, s9\ns_waitcnt lgkmcnt(0)")
    for j in range(4):
        a(f"ds_read_b128 v[{96+4*j}:{99+4*j}], v7 offset:{1296+16*j}")
    a("ds_read_b64 v[112:113], v7 offset:1360\nv_mov_b32 v62, 0\ns_waitcnt lgkmcnt(0)")
    for d in range(18):
        a(f"v_fmac_f32 v62, v{96+d}, v{32+d}")
    bfr(a, "v62")
    a("v_add_f32 v62, 0x358637bd, v62")
    bfr(a, "v62")
    a("v_rcp_f32 v63, v62")
    for e in range(18):
        a(f"v_mov_b32 v{64+e}, 0")
    for d in range(18):
        b = 96 + 20 * (d % 2)
        for j in range(4):
            a(f"ds_read_b128 v[{b+4*j}:{b+3+4*j}], v7 offset:{72*d+16*j}")
        a(f"ds_read_b64 v[{b+16}:{b+17}], v7 offset:{72*d+64}")
        if d > 0:
            pb = 96 + 20 * ((d - 1) % 2)
            a("s_waitcnt lgkmcnt(5)")
            for e in range(18):
                a(f"v_fmac_f32 v{64+e}, v{pb+e}, v{32+d-1}")
    a("s_waitcnt lgkmcnt(0)")
    for e in range(18):
        a(f"v_fmac_f32 v{64+e}, v{96+20+e}, v{32+17}")
    for e in range(18):
        bfr(a, f"v{64+e}")
        a(f"v_mul_f32 v{64+e}, v{64+e}, v63")
    a(f"""
    v_add_u32 v3, s5, v1
    s_movk_i32 s7, {D*2}
    v_mul_lo_u32 v3, v3, s7
    s_mul_i32 s8, s4, 36
    s_add_u32 s8, s8, {WS_O2}
    v_add_u32 v3, s8, v3
    """)
    for i in range(9):
        a(f"v_cvt_pk_bf16_f32 v{16+i}, v{64+2*i}, v{65+2*i}")
    a("buffer_store_dwordx4 v[16:19], v3, s[12:15], 0 offen\nbuffer_store_dwordx4 v[20:23], v3, s[12:15], 0 offen offset:16\nbuffer_store_dword v24, v3, s[12:15], 0 offen offset:32")
    a.label("ko_done")
    a("s_endpgm")

def gen_k2(a):
    kstart(a, "k2_kernel")
    a("""
    s_load_dwordx2 s[40:41], s[0:1], 16
    s_load_dwordx2 s[44:45], s[0:1], 40
    s_load_dwordx2 s[46:47], s[0:1], 72
    s_cmp_ge_u32 s2, 448
    s_cbranch_scc1 k2_done
    """)
    setup_lane_common(a)
    a("s_waitcnt lgkmcnt(0)")
    srd(a, 4, 46, WS_SIZE); srd(a, 12, 46, WS_SIZE)
    a(f"""
    s_mul_hi_u32 s3, s2, 613566757
    s_mul_i32 s35, s3, 7
    s_sub_u32 s35, s2, s35
    s_and_b32 s19, s3, 3
    s_lshr_b32 s17, s3, 2
    s_lshl_b32 s17, s17, 7
    s_mul_i32 s18, s19, 288
    s_mov_b32 s33, {D*4}
    s_mul_i32 s34, s35, {S*D*4}
    s_add_u32 s34, s34, {WS_PART}
    s_cmp_eq_u32 s35, 6
    s_cbranch_scc1 k2_att
    """)
    srd(a, 8, 44, D*DFF*2)
    a(f"s_mul_i32 s24, s35, 1536\ns_mul_i32 s25, s35, {768*D*2}")
    setup_A_lds(a, DFF*2); setup_B(a, D*2); setup_tr(a)
    engine(a, 12, DFF*2, D*2, True)
    a("s_lshl_b32 s18, s18, 1")
    store_epi(a, False, True)
    a("s_branch k2_done")
    a.label("k2_att")
    srd(a, 8, 40, D*D*2)
    a(f"s_mov_b32 s24, {WS_O2}\ns_mov_b32 s25, 0")
    setup_A_lds(a, D*2); setup_B(a, D*2); setup_tr(a)
    engine(a, 9, D*2, D*2, True)
    a("s_lshl_b32 s18, s18, 1")
    store_epi(a, False, True)
    a.label("k2_done")
    a("s_endpgm")

def gen_kfin(a):
    kstart(a, "kfin_kernel")
    a("""
    s_load_dwordx2 s[40:41], s[0:1], 0
    s_load_dwordx2 s[42:43], s[0:1], 48
    s_load_dwordx2 s[44:45], s[0:1], 56
    s_load_dwordx2 s[46:47], s[0:1], 72
    s_cmp_ge_u32 s2, 512
    s_cbranch_scc1 kfin_done
    v_lshrrev_b32 v2, 6, v0
    v_and_b32 v1, 63, v0
    s_nop 0
    v_readfirstlane_b32 s16, v2
    s_lshl_b32 s4, s2, 2
    s_add_u32 s4, s4, s16
    s_waitcnt lgkmcnt(0)
    """)
    srd(a, 4+4, 40, S*D*2); srd(a, 20, 42, D*2); srd(a, 24, 44, S*D*2); srd(a, 12, 46, WS_SIZE)
    a(f"""
    v_lshlrev_b32 v3, 1, v1
    s_mul_i32 s5, s4, {D*2}
    s_mul_i32 s6, s4, {D*4}
    s_add_u32 s6, s6, {WS_PART}
    v_lshlrev_b32 v4, 2, v1
    v_mov_b32 v5, 0
    """)
    for i in range(9):
        a(f"buffer_load_ushort v{16+i}, v3, s[8:11], s5 offen offset:{128*i}\nbuffer_load_ushort v{32+i}, v3, s[20:23], 0 offen offset:{128*i}")
    a("s_waitcnt vmcnt(0)")
    for i in range(9):
        a(f"v_lshlrev_b32 v{16+i}, 16, v{16+i}\nv_lshlrev_b32 v{32+i}, 16, v{32+i}\nv_mul_f32 v{16+i}, v{16+i}, v{32+i}")
        bfr(a, f"v{16+i}")
        a(f"v_add_f32 v5, v5, v{16+i}")
    for off in (1, 2, 4, 8, 16, 32):
        a(f"v_xor_b32 v6, {off*4}, v4\nds_bpermute_b32 v7, v6, v5\ns_waitcnt lgkmcnt(0)\nv_add_f32 v5, v5, v7")
    bfr(a, "v5")
    a("v_mul_f32 v5, 0xbfb8aa3b, v5\nv_exp_f32 v5, v5\ns_nop 0\nv_add_f32 v5, 1.0, v5\nv_rcp_f32 v5, v5\ns_nop 0")
    bfr(a, "v5")
    a("v_sub_f32 v6, 1.0, v5")
    bfr(a, "v6")
    for i in range(9):
        for q in range(7):
            a(f"s_add_u32 s7, s6, {q*S*D*4}\nbuffer_load_dword v{16+7*i+q}, v4, s[12:15], s7 offen offset:{256*i}")
    a("s_waitcnt vmcnt(0)")
    for i in range(9):
        b = 16 + 7 * i
        for q in range(1, 6):
            a(f"v_add_f32 v{b}, v{b}, v{b+q}")
        bfr(a, f"v{b}"); bfr(a, f"v{b+6}")
        a(f"v_mul_f32 v{b}, v{b}, v6\nv_mul_f32 v{b+6}, v{b+6}, v5")
        bfr(a, f"v{b}"); bfr(a, f"v{b+6}")
        a(f"v_add_f32 v{b}, v{b}, v{b+6}\nv_cvt_pk_bf16_f32 v{b}, v{b}, v{b}\nbuffer_store_short v{b}, v3, s[24:27], s5 offen offset:{128*i}")
    a.label("kfin_done")
    a("s_endpgm")

def descriptor(name, vgpr, accum):
    return f""".amdhsa_kernel {name}
  .amdhsa_next_free_vgpr {vgpr}
  .amdhsa_next_free_sgpr 96
  .amdhsa_accum_offset {accum}
  .amdhsa_group_segment_fixed_size 0
  .amdhsa_kernarg_size 80
  .amdhsa_user_sgpr_count 2
  .amdhsa_user_sgpr_kernarg_segment_ptr 1
  .amdhsa_system_sgpr_workgroup_id_x 1
.end_amdhsa_kernel
"""

def main():
    a = Asm()
    hdr = """; generated by gen/gen.py
; @launch kernel=k1_kernel grid=(704,1,1) block=(256,1,1) lds=69632
; @launch kernel=kkv_kernel grid=(512,1,1) block=(256,1,1) lds=18432
; @launch kernel=ko_kernel grid=(256,1,1) block=(256,1,1) lds=6144
; @launch kernel=k2_kernel grid=(448,1,1) block=(256,1,1) lds=69632
; @launch kernel=kfin_kernel grid=(512,1,1) block=(256,1,1) lds=0
.amdgcn_target "amdgcn-amd-amdhsa--gfx950"
.text
"""
    gen_k1(a); gen_kkv(a); gen_ko(a); gen_k2(a); gen_kfin(a)
    out = hdr + a.text() + '.section .rodata,"a"\n'
    for k in ("k1", "k2"):
        out += ".p2align 6\n" + descriptor(k + "_kernel", 184, 112)
    for k in ("kkv", "ko", "kfin"):
        out += ".p2align 6\n" + descriptor(k + "_kernel", 168, 168)
    open(sys.argv[1] if len(sys.argv) > 1 else f"cdna_kernels/{NAME}.s", "w").write(out)

main()
```

```python
import sys, os
from emit import Asm
DBG = os.environ.get('GDBG','')

NAME = "gated_mix__linear_attn_block__dense_activation_relu__prompt"
S, D, DFF, H, DH = 2048, 576, 4608, 32, 18
WS_H    = 0x0000000
WS_PQ   = 0x1400000
WS_G    = 0x1800000
WS_KVP  = 0x1B40000
WS_KVZ  = 0x1C00000
WS_O    = 0x2000000
WS_PART = 0x3000000
WS_SIZE = 0x10000000

BSTAGE = 18432
PF = 4
NBF = 6
VB = 80
VA = 16

def setup_lane_common(a):
    a("""
    v_and_b32 v1, 63, v0
    v_lshrrev_b32 v11, 6, v0
    s_nop 0
    v_readfirstlane_b32 s16, v11
    """)

def setup_A(a, strideA):
    a(f"""
    v_and_b32 v11, 15, v1
    s_lshl_b32 s22, s16, 5
    s_add_u32 s22, s22, s17
    v_add_u32 v11, s22, v11
    s_mov_b32 s23, {strideA}
    v_mul_lo_u32 v2, v11, s23
    v_lshrrev_b32 v12, 4, v1
    v_lshlrev_b32 v12, 4, v12
    v_add_u32 v2, v2, v12
    v_add_u32 v3, {16*strideA}, v2
    """)

def setup_B(a, strideB, split=None):
    for j in range(5):
        a(f"""
        s_mul_i32 s22, s16, 288
        s_add_u32 s22, s22, {64*j}
        v_add_u32 v11, s22, v1
        s_movk_i32 s23, 3641
        v_mul_lo_u32 v12, v11, s23
        v_lshrrev_b32 v12, 16, v12
        v_mul_u32_u24 v13, 18, v12
        v_sub_u32 v13, v11, v13
        v_lshrrev_b32 v14, 3, v12
        v_and_b32 v14, 1, v14
        v_lshlrev_b32 v14, 2, v14
        v_xor_b32 v12, v12, v14
        s_mov_b32 s23, {strideB}
        v_mul_lo_u32 v12, v12, s23
        v_lshlrev_b32 v14, 4, v13
        v_add_u32 v12, v12, v14
        """)
        if split is not None:
            a(f"""
            v_mov_b32 v14, {split}
            v_cmp_lt_u32 vcc, 8, v13
            v_cndmask_b32 v14, 0, v14, vcc
            v_add_u32 v12, v12, v14
            """)
        a(f"v_add_u32 v{4+j}, s18, v12")

def setup_tr(a):
    a("""
    v_lshrrev_b32 v11, 4, v1
    v_and_b32 v12, 15, v1
    v_lshrrev_b32 v13, 2, v12
    v_and_b32 v14, 3, v12
    v_and_b32 v15, 1, v11
    v_lshlrev_b32 v15, 2, v15
    v_lshlrev_b32 v11, 3, v11
    v_add_u32 v11, v11, v13
    v_add_u32 v12, v11, v15
    v_mul_u32_u24 v12, 288, v12
    v_lshlrev_b32 v14, 3, v14
    v_add_u32 v9, v12, v14
    v_xor_b32 v15, 4, v15
    v_add_u32 v12, v11, v15
    v_mul_u32_u24 v12, 288, v12
    v_add_u32 v10, v12, v14
    """)

def issue_A(a, st, setidx):
    base = VA + 16 * setidx
    if 'noA' in DBG:
        for i in range(4): a("buffer_load_dword v15, v2, s[4:7], s24 offen")
        return
    for rt in range(2):
        for ks in range(2):
            r = base + (rt * 2 + ks) * 4
            a(f"buffer_load_dwordx4 v[{r}:{r+3}], v{2+rt}, s[4:7], s24 offen offset:{ks*64}")
    a("s_add_u32 s24, s24, 128")

def issue_DMA(a, st, strideB):
    buf = st % 3
    for j in range(5):
        a(f"s_add_u32 m0, s26, {buf*BSTAGE + j*1024}")
        if j == 4:
            a("s_mov_b64 exec, 0xffffffff")
        else:
            a("s_nop 0")
        a(f"buffer_load_dwordx4 v{4+j}, s[8:11], s25 offen lds" if 'noB' not in DBG else "buffer_load_dword v15, v2, s[4:7], s24 offen")
        if j == 4:
            a("s_mov_b64 exec, -1")
    a(f"s_add_u32 s25, s25, {64*strideB}")

ASTAGE = 16384
RING = 2
LDS_A = RING * BSTAGE

def setup_A_lds(a, strideA):
    a(f"""
    v_lshrrev_b32 v11, 3, v1
    s_lshl_b32 s22, s16, 5
    s_add_u32 s22, s22, s17
    v_add_u32 v12, s22, v11
    s_mov_b32 s23, {strideA}
    v_mul_lo_u32 v2, v12, s23
    v_lshrrev_b32 v12, 1, v11
    v_and_b32 v12, 7, v12
    v_and_b32 v13, 7, v1
    v_xor_b32 v12, v12, v13
    v_lshlrev_b32 v12, 4, v12
    v_xor_b32 v13, 64, v12
    v_add_u32 v105, v2, v13
    v_add_u32 v2, v2, v12
    v_and_b32 v11, 15, v1
    v_lshrrev_b32 v12, 4, v1
    v_lshrrev_b32 v13, 1, v11
    v_and_b32 v13, 7, v13
    v_xor_b32 v14, v12, v13
    v_lshlrev_b32 v14, 4, v14
    v_xor_b32 v15, 4, v12
    v_xor_b32 v15, v15, v13
    v_lshlrev_b32 v15, 4, v15
    s_lshl_b32 s22, s16, 12
    v_lshlrev_b32 v11, 7, v11
    v_add_u32 v11, s22, v11
    v_add_u32 v11, 36864, v11
    v_add_u32 v3, v11, v14
    v_add_u32 v104, v11, v15
    """)

def issue_groups(buf, strideA, strideB):
    g = []
    pre = "s_cmp_gt_i32 s28, 0\ns_cselect_b32 s36, s25, s29\ns_cselect_b32 s37, s24, s29\n"
    for j in range(4):
        g.append((pre if j == 0 else "") + f"s_add_u32 m0, s31, {LDS_A + buf*ASTAGE + j*1024}\ns_add_u32 s27, s37, {j*8*strideA}\nbuffer_load_dwordx4 v{2 if j%2==0 else 105}, s[4:7], s27 offen lds")
    for j in range(5):
        t = f"s_add_u32 m0, s26, {buf*BSTAGE + j*1024}\n"
        t += "s_mov_b64 exec, 0xffffffff\n" if j == 4 else "s_nop 0\n"
        t += f"buffer_load_dwordx4 v{4+j}, s[8:11], s36 offen lds\n"
        if j == 4:
            t += f"s_mov_b64 exec, -1\ns_add_u32 s25, s25, {64*strideB}\ns_add_u32 s24, s24, 128\ns_sub_u32 s28, s28, 1"
        g.append(t)
    return g

def issue_stage(a, buf, strideA, strideB):
    for t in issue_groups(buf, strideA, strideB):
        a(t)

def engine(a, nst, strideA, strideB, swap):
    for i in range(72):
        a(f"v_accvgpr_write_b32 a{i}, 0")
    a(f"""
    s_mul_i32 s26, s16, 4608
    s_lshl_b32 s31, s16, 12
    s_mov_b32 s29, 0x7ffffff0
    s_mov_b32 s28, {nst}
    s_mov_b32 s30, {nst}
    """)
    for r in range(RING - 1):
        issue_stage(a, r, strideA, strideB)
    loop = a.newlabel("Lloop")
    lend = a.newlabel("Lend")
    a.label(loop)
    for st in range(RING):
        a(f"s_waitcnt vmcnt({9*(RING-2)})")
        a("s_barrier")
        groups = issue_groups((st + RING - 1) % RING, strideA, strideB)
        buf = st
        for rt in range(2):
            for ks in range(2):
                r = VA + (rt * 2 + ks) * 4
                a(f"ds_read_b128 v[{r}:{r+3}], v{3 if ks == 0 else 104} offset:{buf*ASTAGE + rt*2048}")
        def rd(f):
            ks, t = divmod(f, 9)
            r = VB + (f % NBF) * 4
            off = buf * BSTAGE + ks * 9216 + t * 32
            a(f"ds_read_b64_tr_b16 v[{r}:{r+1}], v9 offset:{off}")
            a(f"ds_read_b64_tr_b16 v[{r+2}:{r+3}], v10 offset:{off}")
        for f in range(PF):
            rd(f)
        for f in range(18):
            if f + PF < 18:
                rd(f + PF)
            if f % 2 == 1 and f // 2 < 9:
                a(groups[f // 2])
            a(f"s_waitcnt lgkmcnt({2*min(PF, 17-f)})")
            ks, t = divmod(f, 9)
            r = VB + (f % NBF) * 4
            for rt in range(2):
                ar = VA + (rt * 2 + ks) * 4
                c = (rt * 9 + t) * 4
                if swap:
                    a(f"v_mfma_f32_16x16x32_bf16 a[{c}:{c+3}], v[{r}:{r+3}], v[{ar}:{ar+3}], a[{c}:{c+3}]")
                else:
                    a(f"v_mfma_f32_16x16x32_bf16 a[{c}:{c+3}], v[{ar}:{ar+3}], v[{r}:{r+3}], a[{c}:{c+3}]")
        a("s_sub_u32 s30, s30, 1")
        a("s_cmp_eq_u32 s30, 0")
        a(f"s_cbranch_scc1 {lend}" if st < RING - 1 else f"s_cbranch_scc0 {loop}")
    a.label(lend)
    a("s_waitcnt vmcnt(0)")

WS_QKV = 0x1400000
WS_KVF = 0x1C00000
WS_O2  = 0x2000000

def kstart(a, name):
    a.raw(f".globl {name}\n.p2align 8\n.type {name},@function")
    a.label(name)

def store_epi(a, relu, f32part):
    a(f"""
    s_nop 7
    s_nop 7
    v_and_b32 v11, 15, v1
    s_lshl_b32 s22, s16, 5
    s_add_u32 s22, s22, s17
    v_add_u32 v11, s22, v11
    v_mul_lo_u32 v12, v11, s33
    v_lshrrev_b32 v13, 4, v1
    v_lshlrev_b32 v13, {4 if f32part else 3}, v13
    v_add_u32 v12, v12, v13
    v_add_u32 v12, s18, v12
    v_add_u32 v12, s34, v12
    s_lshl_b32 s22, s33, 4
    v_add_u32 v13, s22, v12
    """)
    for rt in range(2):
        for t in range(9):
            c = (rt * 9 + t) * 4
            b = 16 + 8 * (t % 4)
            a(f"""
            s_nop 1
            v_accvgpr_read_b32 v{b}, a{c}
            v_accvgpr_read_b32 v{b+1}, a{c+1}
            v_accvgpr_read_b32 v{b+2}, a{c+2}
            v_accvgpr_read_b32 v{b+3}, a{c+3}
            """)
            if f32part:
                a(f"buffer_store_dwordx4 v[{b}:{b+3}], v{12+rt}, s[12:15], 0 offen offset:{t*64}")
                continue
            if relu:
                for i in range(4): a(f"v_max_f32 v{b+i}, 0, v{b+i}")
            a(f"""
            v_cvt_pk_bf16_f32 v{b+4}, v{b}, v{b+1}
            v_cvt_pk_bf16_f32 v{b+5}, v{b+2}, v{b+3}
            buffer_store_dwordx2 v[{b+4}:{b+5}], v{12+rt}, s[12:15], 0 offen offset:{t*32}
            """)

def srd(a, d, lo, size):
    a(f"s_mov_b32 s{d}, s{lo}\ns_mov_b32 s{d+1}, s{lo+1}\ns_mov_b32 s{d+2}, {size}\ns_mov_b32 s{d+3}, 0x00020000")

def gen_k1(a):
    kstart(a, "k1_kernel")
    a("""
    s_load_dwordx4 s[40:43], s[0:1], 0
    s_load_dwordx2 s[44:45], s[0:1], 32
    s_load_dwordx2 s[46:47], s[0:1], 72
    s_cmp_ge_u32 s2, 704
    s_cbranch_scc1 k1_done
    """)
    setup_lane_common(a)
    a("s_waitcnt lgkmcnt(0)")
    srd(a, 4, 40, S*D*2); srd(a, 12, 46, WS_SIZE)
    a("s_mov_b32 s24, 0\ns_mov_b32 s25, 0\ns_cmp_ge_u32 s2, 192\ns_cbranch_scc1 k1_ffn")
    srd(a, 8, 42, D*3*D*2)
    a(f"""
    s_mul_hi_u32 s17, s2, {(2**32+11)//12}
    s_mul_i32 s19, s17, 12
    s_sub_u32 s19, s2, s19
    s_lshl_b32 s17, s17, 7
    s_mul_i32 s18, s19, 288
    s_mov_b32 s33, {3*D*2}
    s_mov_b32 s34, {WS_QKV}
    """)
    setup_A_lds(a, D*2); setup_B(a, 3*D*2); setup_tr(a)
    engine(a, 9, D*2, 3*D*2, True)
    store_epi(a, False, False)
    a("s_branch k1_done")
    a.label("k1_ffn")
    srd(a, 8, 44, D*DFF*2)
    a(f"""
    s_sub_u32 s3, s2, 192
    s_and_b32 s19, s3, 31
    s_lshr_b32 s17, s3, 5
    s_lshl_b32 s17, s17, 7
    s_mul_i32 s18, s19, 288
    s_mov_b32 s33, {DFF*2}
    s_mov_b32 s34, {WS_H}
    """)
    setup_A_lds(a, D*2); setup_B(a, DFF*2); setup_tr(a)
    engine(a, 9, D*2, DFF*2, True)
    store_epi(a, True, False)
    a.label("k1_done")
    a("s_endpgm")

def phi(a, v, t1, t2):
    a(f"""
    v_add_f32 {t1}, 1.0, {v}
    v_mul_f32 {t2}, 0x3fb8aa3b, {v}
    v_exp_f32 {t2}, {t2}
    v_cmp_lt_f32 vcc, 0, {v}
    v_cndmask_b32 {v}, {t2}, {t1}, vcc
    v_cvt_pk_bf16_f32 {v}, {v}, {v}
    v_lshlrev_b32 {v}, 16, {v}
    v_add_f32 {v}, 0x358637bd, {v}
    v_cvt_pk_bf16_f32 {v}, {v}, {v}
    v_lshlrev_b32 {v}, 16, {v}
    """)

def gen_kkv(a):
    kstart(a, "kkv_kernel")
    a(f"""
    s_load_dwordx2 s[46:47], s[0:1], 72
    s_cmp_ge_u32 s2, 512
    s_cbranch_scc1 kkv_done
    s_waitcnt lgkmcnt(0)
    """)
    srd(a, 12, 46, WS_SIZE)
    a(f"""
    s_lshr_b32 s4, s2, 4
    s_and_b32 s5, s2, 15
    v_lshrrev_b32 v1, 1, v0
    v_and_b32 v2, 1, v0
    s_lshl_b32 s6, s5, 7
    v_add_u32 v3, s6, v1
    s_movk_i32 s7, {3*D*2}
    v_mul_lo_u32 v3, v3, s7
    s_mul_i32 s8, s4, 36
    s_add_u32 s8, s8, {WS_QKV + D*2}
    v_add_u32 v3, s8, v3
    v_mul_u32_u24 v4, {D*2}, v2
    v_add_u32 v3, v3, v4
    """)
    a("buffer_load_dwordx4 v[16:19], v3, s[12:15], 0 offen\nbuffer_load_dwordx4 v[20:23], v3, s[12:15], 0 offen offset:16\nbuffer_load_dword v24, v3, s[12:15], 0 offen offset:32")
    a(f"""
    v_mul_u32_u24 v5, 144, v1
    v_mul_u32_u24 v6, 72, v2
    v_add_u32 v5, v5, v6
    v_cmp_eq_u32 s[20:21], 0, v2
    s_waitcnt vmcnt(0)
    """)
    for i in range(9):
        for hi in range(2):
            a(f"v_lshlrev_b32 v30, 16, v{16+i}" if hi == 0 else f"v_and_b32 v30, 0xffff0000, v{16+i}")
            a("v_mov_b32 v31, v30")
            phi(a, "v31", "v32", "v33")
            a(f"v_cndmask_b32 v30, v30, v31, s[20:21]")
            a(f"ds_write_b32 v5, v30 offset:{(2*i+hi)*4}")
    a("s_waitcnt lgkmcnt(0)\ns_barrier")
    for rep in range(2):
        a(f"""
        v_add_u32 v7, {256*rep}, v0
        s_movk_i32 s7, 3641
        v_mul_lo_u32 v8, v7, s7
        v_lshrrev_b32 v8, 16, v8
        v_mul_u32_u24 v9, 18, v8
        v_sub_u32 v9, v7, v9
        v_cmp_gt_u32 vcc, 324, v7
        v_cndmask_b32 v8, v9, v8, vcc
        v_lshlrev_b32 v8, 2, v8
        v_lshlrev_b32 v9, 2, v9
        v_add_u32 v9, 72, v9
        v_mov_b32 v10, 0
        s_mov_b32 s10, 0
        """)
        L = a.newlabel("kvL")
        a.label(L)
        for u in range(8):
            a(f"ds_read_b32 v{40+u}, v8 offset:{144*u}\nds_read_b32 v{48+u}, v9 offset:{144*u}")
        a("v_add_u32 v8, 1152, v8\nv_add_u32 v9, 1152, v9\ns_waitcnt lgkmcnt(0)")
        for u in range(8):
            a(f"v_cndmask_b32 v{48+u}, 1.0, v{48+u}, vcc\nv_fmac_f32 v10, v{40+u}, v{48+u}")
        a(f"""
        s_add_u32 s10, s10, 8
        s_cmp_lt_u32 s10, 128
        s_cbranch_scc1 {L}
        s_mul_i32 s11, s2, 1368
        s_add_u32 s11, s11, {WS_KVP}
        v_lshlrev_b32 v13, 2, v7
        v_add_u32 v13, s11, v13
        v_cmp_gt_u32 vcc, 342, v7
        s_and_saveexec_b64 s[24:25], vcc
        buffer_store_dword v10, v13, s[12:15], 0 offen
        s_mov_b64 exec, s[24:25]
        """)
    a.label("kkv_done")
    a("s_endpgm")

def gen_kred(a):
    kstart(a, "kred_kernel")
    a(f"""
    s_load_dwordx2 s[46:47], s[0:1], 72
    s_cmp_ge_u32 s2, 32
    s_cbranch_scc1 kred_done
    s_waitcnt lgkmcnt(0)
    """)
    srd(a, 12, 46, WS_SIZE)
    for rep in range(2):
        a(f"""
        v_add_u32 v7, {256*rep}, v0
        s_mul_i32 s11, s2, {16*1368}
        s_add_u32 s11, s11, {WS_KVP}
        v_lshlrev_b32 v13, 2, v7
        v_add_u32 v13, s11, v13
        """)
        for i in range(16):
            a(f"s_movk_i32 s9, {1368*i}\nbuffer_load_dword v{16+i}, v13, s[12:15], s9 offen")
        a("s_waitcnt vmcnt(0)")
        for i in range(1, 16):
            a(f"v_add_f32 v16, v16, v{16+i}")
        a(f"""
        v_cvt_pk_bf16_f32 v16, v16, v16
        v_lshlrev_b32 v16, 16, v16
        s_mul_i32 s11, s2, 1368
        s_add_u32 s11, s11, {WS_KVF}
        v_lshlrev_b32 v13, 2, v7
        v_add_u32 v13, s11, v13
        v_cmp_gt_u32 vcc, 342, v7
        s_and_saveexec_b64 s[24:25], vcc
        buffer_store_dword v16, v13, s[12:15], 0 offen
        s_mov_b64 exec, s[24:25]
        """)
    a.label("kred_done")
    a("s_endpgm")

def bfr(a, v):
    a(f"v_cvt_pk_bf16_f32 {v}, {v}, {v}\nv_lshlrev_b32 {v}, 16, {v}")

def gen_ko(a):
    kstart(a, "ko_kernel")
    a(f"""
    s_load_dwordx2 s[46:47], s[0:1], 72
    s_cmp_ge_u32 s2, 256
    s_cbranch_scc1 ko_done
    v_lshrrev_b32 v2, 6, v0
    v_and_b32 v1, 63, v0
    s_nop 0
    v_readfirstlane_b32 s16, v2
    s_and_b32 s4, s2, 7
    s_lshl_b32 s4, s4, 2
    s_add_u32 s4, s4, s16
    s_lshr_b32 s5, s2, 3
    s_lshl_b32 s5, s5, 6
    s_waitcnt lgkmcnt(0)
    """)
    srd(a, 12, 46, WS_SIZE)
    a(f"""
    v_add_u32 v3, s5, v1
    s_movk_i32 s7, {3*D*2}
    v_mul_lo_u32 v3, v3, s7
    s_mul_i32 s8, s4, 36
    s_add_u32 s8, s8, {WS_QKV}
    v_add_u32 v3, s8, v3
    """)
    a("buffer_load_dwordx4 v[16:19], v3, s[12:15], 0 offen\nbuffer_load_dwordx4 v[20:23], v3, s[12:15], 0 offen offset:16\nbuffer_load_dword v24, v3, s[12:15], 0 offen offset:32")
    a(f"""
    s_mul_i32 s6, s4, {16*1368}
    s_add_u32 s6, s6, {WS_KVP}
    v_lshlrev_b32 v4, 2, v1
    v_add_u32 v5, s6, v4
    s_mul_i32 s9, s16, 1536
    v_add_u32 v6, s9, v4
    """)
    for c in range(16):
        a(f"s_movk_i32 s9, {1368*c}")
        for i in range(6):
            a(f"buffer_load_dword v{64+6*c+i}, v5, s[12:15], s9 offen offset:{256*i}")
    a("s_waitcnt vmcnt(0)")
    for i in range(6):
        for c in range(1, 16):
            a(f"v_add_f32 v{64+i}, v{64+i}, v{64+6*c+i}")
        bfr(a, f"v{64+i}")
        a(f"ds_write_b32 v6, v{64+i} offset:{256*i}")
    for i in range(9):
        a(f"v_lshlrev_b32 v{32+2*i}, 16, v{16+i}\nv_and_b32 v{33+2*i}, 0xffff0000, v{16+i}")
    for d in range(18):
        phi(a, f"v{32+d}", "v60", "v61")
    a("s_mul_i32 s9, s16, 1536\nv_mov_b32 v7, s9\ns_waitcnt lgkmcnt(0)")
    for j in range(4):
        a(f"ds_read_b128 v[{96+4*j}:{99+4*j}], v7 offset:{1296+16*j}")
    a("ds_read_b64 v[112:113], v7 offset:1360\nv_mov_b32 v62, 0\ns_waitcnt lgkmcnt(0)")
    for d in range(18):
        a(f"v_fmac_f32 v62, v{96+d}, v{32+d}")
    bfr(a, "v62")
    a("v_add_f32 v62, 0x358637bd, v62")
    bfr(a, "v62")
    a("v_rcp_f32 v63, v62")
    for e in range(18):
        a(f"v_mov_b32 v{64+e}, 0")
    for d in range(18):
        b = 96 + 20 * (d % 2)
        for j in range(4):
            a(f"ds_read_b128 v[{b+4*j}:{b+3+4*j}], v7 offset:{72*d+16*j}")
        a(f"ds_read_b64 v[{b+16}:{b+17}], v7 offset:{72*d+64}")
        if d > 0:
            pb = 96 + 20 * ((d - 1) % 2)
            a("s_waitcnt lgkmcnt(5)")
            for e in range(18):
                a(f"v_fmac_f32 v{64+e}, v{pb+e}, v{32+d-1}")
    a("s_waitcnt lgkmcnt(0)")
    for e in range(18):
        a(f"v_fmac_f32 v{64+e}, v{96+20+e}, v{32+17}")
    for e in range(18):
        bfr(a, f"v{64+e}")
        a(f"v_mul_f32 v{64+e}, v{64+e}, v63")
    a(f"""
    v_add_u32 v3, s5, v1
    s_movk_i32 s7, {D*2}
    v_mul_lo_u32 v3, v3, s7
    s_mul_i32 s8, s4, 36
    s_add_u32 s8, s8, {WS_O2}
    v_add_u32 v3, s8, v3
    """)
    for i in range(9):
        a(f"v_cvt_pk_bf16_f32 v{16+i}, v{64+2*i}, v{65+2*i}")
    a("buffer_store_dwordx4 v[16:19], v3, s[12:15], 0 offen\nbuffer_store_dwordx4 v[20:23], v3, s[12:15], 0 offen offset:16\nbuffer_store_dword v24, v3, s[12:15], 0 offen offset:32")
    a.label("ko_done")
    a("s_endpgm")

def gen_k2(a):
    kstart(a, "k2_kernel")
    a("""
    s_load_dwordx2 s[40:41], s[0:1], 16
    s_load_dwordx2 s[44:45], s[0:1], 40
    s_load_dwordx2 s[46:47], s[0:1], 72
    s_cmp_ge_u32 s2, 448
    s_cbranch_scc1 k2_done
    """)
    setup_lane_common(a)
    a("s_waitcnt lgkmcnt(0)")
    srd(a, 4, 46, WS_SIZE); srd(a, 12, 46, WS_SIZE)
    a(f"""
    s_mul_hi_u32 s3, s2, 613566757
    s_mul_i32 s35, s3, 7
    s_sub_u32 s35, s2, s35
    s_and_b32 s19, s3, 3
    s_lshr_b32 s17, s3, 2
    s_lshl_b32 s17, s17, 7
    s_mul_i32 s18, s19, 288
    s_mov_b32 s33, {D*4}
    s_mul_i32 s34, s35, {S*D*4}
    s_add_u32 s34, s34, {WS_PART}
    s_cmp_eq_u32 s35, 6
    s_cbranch_scc1 k2_att
    """)
    srd(a, 8, 44, D*DFF*2)
    a(f"s_mul_i32 s24, s35, 1536\ns_mul_i32 s25, s35, {768*D*2}")
    setup_A_lds(a, DFF*2); setup_B(a, D*2); setup_tr(a)
    engine(a, 12, DFF*2, D*2, True)
    a("s_lshl_b32 s18, s18, 1")
    store_epi(a, False, True)
    a("s_branch k2_done")
    a.label("k2_att")
    srd(a, 8, 40, D*D*2)
    a(f"s_mov_b32 s24, {WS_O2}\ns_mov_b32 s25, 0")
    setup_A_lds(a, D*2); setup_B(a, D*2); setup_tr(a)
    engine(a, 9, D*2, D*2, True)
    a("s_lshl_b32 s18, s18, 1")
    store_epi(a, False, True)
    a.label("k2_done")
    a("s_endpgm")

def gen_kfin(a):
    kstart(a, "kfin_kernel")
    a("""
    s_load_dwordx2 s[40:41], s[0:1], 0
    s_load_dwordx2 s[42:43], s[0:1], 48
    s_load_dwordx2 s[44:45], s[0:1], 56
    s_load_dwordx2 s[46:47], s[0:1], 72
    s_cmp_ge_u32 s2, 512
    s_cbranch_scc1 kfin_done
    v_lshrrev_b32 v2, 6, v0
    v_and_b32 v1, 63, v0
    s_nop 0
    v_readfirstlane_b32 s16, v2
    s_lshl_b32 s4, s2, 2
    s_add_u32 s4, s4, s16
    s_waitcnt lgkmcnt(0)
    """)
    srd(a, 4+4, 40, S*D*2); srd(a, 20, 42, D*2); srd(a, 24, 44, S*D*2); srd(a, 12, 46, WS_SIZE)
    a(f"""
    v_lshlrev_b32 v3, 1, v1
    s_mul_i32 s5, s4, {D*2}
    s_mul_i32 s6, s4, {D*4}
    s_add_u32 s6, s6, {WS_PART}
    v_lshlrev_b32 v4, 2, v1
    v_mov_b32 v5, 0
    """)
    for i in range(9):
        a(f"buffer_load_ushort v{16+i}, v3, s[8:11], s5 offen offset:{128*i}\nbuffer_load_ushort v{32+i}, v3, s[20:23], 0 offen offset:{128*i}")
    a("s_waitcnt vmcnt(0)")
    for i in range(9):
        a(f"v_lshlrev_b32 v{16+i}, 16, v{16+i}\nv_lshlrev_b32 v{32+i}, 16, v{32+i}\nv_mul_f32 v{16+i}, v{16+i}, v{32+i}")
        bfr(a, f"v{16+i}")
        a(f"v_add_f32 v5, v5, v{16+i}")
    for off in (1, 2, 4, 8, 16, 32):
        a(f"v_xor_b32 v6, {off*4}, v4\nds_bpermute_b32 v7, v6, v5\ns_waitcnt lgkmcnt(0)\nv_add_f32 v5, v5, v7")
    bfr(a, "v5")
    a("v_mul_f32 v5, 0xbfb8aa3b, v5\nv_exp_f32 v5, v5\ns_nop 0\nv_add_f32 v5, 1.0, v5\nv_rcp_f32 v5, v5\ns_nop 0")
    bfr(a, "v5")
    a("v_sub_f32 v6, 1.0, v5")
    bfr(a, "v6")
    for i in range(9):
        for q in range(7):
            a(f"s_add_u32 s7, s6, {q*S*D*4}\nbuffer_load_dword v{16+7*i+q}, v4, s[12:15], s7 offen offset:{256*i}")
    a("s_waitcnt vmcnt(0)")
    for i in range(9):
        b = 16 + 7 * i
        for q in range(1, 6):
            a(f"v_add_f32 v{b}, v{b}, v{b+q}")
        bfr(a, f"v{b}"); bfr(a, f"v{b+6}")
        a(f"v_mul_f32 v{b}, v{b}, v6\nv_mul_f32 v{b+6}, v{b+6}, v5")
        bfr(a, f"v{b}"); bfr(a, f"v{b+6}")
        a(f"v_add_f32 v{b}, v{b}, v{b+6}\nv_cvt_pk_bf16_f32 v{b}, v{b}, v{b}\nbuffer_store_short v{b}, v3, s[24:27], s5 offen offset:{128*i}")
    a.label("kfin_done")
    a("s_endpgm")

def descriptor(name, vgpr, accum):
    return f""".amdhsa_kernel {name}
  .amdhsa_next_free_vgpr {vgpr}
  .amdhsa_next_free_sgpr 96
  .amdhsa_accum_offset {accum}
  .amdhsa_group_segment_fixed_size 0
  .amdhsa_kernarg_size 80
  .amdhsa_user_sgpr_count 2
  .amdhsa_user_sgpr_kernarg_segment_ptr 1
  .amdhsa_system_sgpr_workgroup_id_x 1
.end_amdhsa_kernel
"""

def main():
    a = Asm()
    hdr = """; generated by gen/gen.py
; @launch kernel=k1_kernel grid=(704,1,1) block=(256,1,1) lds=69632
; @launch kernel=kkv_kernel grid=(512,1,1) block=(256,1,1) lds=18432
; @launch kernel=ko_kernel grid=(256,1,1) block=(256,1,1) lds=6144
; @launch kernel=k2_kernel grid=(448,1,1) block=(256,1,1) lds=69632
; @launch kernel=kfin_kernel grid=(512,1,1) block=(256,1,1) lds=0
.amdgcn_target "amdgcn-amd-amdhsa--gfx950"
.text
"""
    gen_k1(a); gen_kkv(a); gen_ko(a); gen_k2(a); gen_kfin(a)
    out = hdr + a.text() + '.section .rodata,"a"\n'
    for k in ("k1", "k2"):
        out += ".p2align 6\n" + descriptor(k + "_kernel", 184, 112)
    for k in ("kkv", "ko", "kfin"):
        out += ".p2align 6\n" + descriptor(k + "_kernel", 168, 168)
    open(sys.argv[1] if len(sys.argv) > 1 else f"cdna_kernels/{NAME}.s", "w").write(out)

main()
```
